```python
import torch

def _softmax(x, axis=-1):
    return torch.softmax(x, dim=axis)

def _gelu(x):
    return torch.nn.functional.gelu(x, approximate='tanh')

def _silu(x):
    return torch.nn.functional.silu(x)

def _sigmoid(x):
    return torch.sigmoid(x)

def _layernorm(x, axis=-1, eps=1e-05):
    m = x.mean(dim=axis, keepdim=True)
    v = x.var(dim=axis, keepdim=True, unbiased=False)
    return (x - m) / torch.sqrt(v + eps)

def _scatter_add(tgt, idx, src, axis=0):
    return tgt.clone().index_add_(axis, idx, src)

def _segment_sum(src, seg, n):
    out = torch.zeros((n,) + src.shape[1:], dtype=src.dtype)
    return out.index_add_(0, seg, src)

def _pad(x, pw):
    flat = tuple((v for pair in reversed(pw) for v in pair))
    return torch.nn.functional.pad(x, flat)
kernel_name = 'adaLN_cond__linear_kernel_hedgehog__glu_gated_geglu__prompt'

def setup_inputs():

    _w = lambda a: (lambda t: t.to(torch.bfloat16) if t.is_floating_point() else t)(torch.as_tensor(a))

    def _A_setup():
        B, S, D, H = (1, 2048, 576, 32)
        Dh = D // H
        return {'x': _w((lambda *s: torch.randn(*s, dtype=torch.bfloat16) * 0.05)(B, S, D)), 'wqkv': _w((lambda *s: torch.randn(*s, dtype=torch.bfloat16) * 0.4)(D, 3 * D)), 'w_phi': _w((lambda *s: torch.randn(*s, dtype=torch.bfloat16) * 0.4)(H, Dh, Dh) * Dh ** (-0.5)), 'wo': _w((lambda *s: torch.randn(*s, dtype=torch.bfloat16) * 0.05)(D, D))}
    _A_in = _A_setup()

    def _B_setup():
        B, S, Dm, Df = (1, 2048, 576, 4608)
        return {'x': _w((lambda *s: torch.randn(*s, dtype=torch.bfloat16) * 0.05)(B, S, Dm)), 'w_gate': _w((lambda *s: torch.randn(*s, dtype=torch.bfloat16) * 1.6)(Dm, Df) * Dm ** (-0.5)), 'w_up': _w((lambda *s: torch.randn(*s, dtype=torch.bfloat16) * 1.6)(Dm, Df) * Dm ** (-0.5)), 'w_down': _w((lambda *s: torch.randn(*s, dtype=torch.bfloat16) * 1.6)(Df, Dm) * Df ** (-0.5))}
    _B_in = _B_setup()
    return {'A_x': _A_in['x'], 'A_wqkv': _A_in['wqkv'], 'A_w_phi': _A_in['w_phi'], 'A_wo': _A_in['wo'], 'B_x': _B_in['x'], 'B_w_gate': _B_in['w_gate'], 'B_w_up': _B_in['w_up'], 'B_w_down': _B_in['w_down'], 'c': _w((lambda *s: torch.randn(*s, dtype=torch.bfloat16) * 0.1)(1, 576) * 8.0), 'w_mod': _w((lambda *s: torch.randn(*s, dtype=torch.bfloat16) * 0.1)(576, 6 * 576) * 576 ** (-0.5) * 8.0)}

def reference(A_x, A_wqkv, A_w_phi, A_wo, B_x, B_w_gate, B_w_up, B_w_down, c, w_mod):

    def _A_ref(x, wqkv, w_phi, wo):
        B, S, D = x.shape
        H = 32
        Dh = D // H
        qkv = (lambda x, *d: x.permute(*d))((x @ wqkv).reshape(B, S, 3, H, Dh), 2, 0, 3, 1, 4)
        q, k, v = (qkv[0], qkv[1], qkv[2])
        pq = torch.einsum('bhsd,hdf->bhsf', q, w_phi)
        pk = torch.einsum('bhsd,hdf->bhsf', k, w_phi)
        phi_q = torch.concatenate([_softmax(pq, axis=-1), _softmax(-pq, axis=-1)], axis=-1)
        phi_k = torch.concatenate([_softmax(pk, axis=-1), _softmax(-pk, axis=-1)], axis=-1)
        kv = torch.einsum('bhsf,bhsd->bhfd', phi_k, v)
        z = torch.einsum('bhsf->bhf', phi_k)
        num = torch.einsum('bhqf,bhfd->bhqd', phi_q, kv)
        den = torch.einsum('bhqf,bhf->bhq', phi_q, z)[..., None] + 1e-06
        o = num / den
        return (lambda x, *d: x.permute(*d))(o, 0, 2, 1, 3).reshape(B, S, D) @ wo

    def _B_ref(x, w_gate, w_up, w_down):
        g = torch.einsum('bsd,df->bsf', x, w_gate)
        u = torch.einsum('bsd,df->bsf', x, w_up)
        h = _gelu(g) * u
        return torch.einsum('bsf,fd->bsd', h, w_down)
    x = A_x
    mod = (_silu(c) @ w_mod).reshape(c.shape[0], 6, 1, -1)
    sa, ca, ga, sb, cb, gb = (mod[:, 0].clone(), mod[:, 1].clone(), mod[:, 2].clone(), mod[:, 3].clone(), mod[:, 4].clone(), mod[:, 5].clone())
    h = _layernorm(x, axis=-1) * (1 + ca) + sa
    x = x + ga * _A_ref(h, A_wqkv, A_w_phi, A_wo)
    h = _layernorm(x, axis=-1) * (1 + cb) + sb
    x = x + gb * _B_ref(h, B_w_gate, B_w_up, B_w_down)
    return x
```

```python
import re

TRANS = ("v_exp_f32", "v_log_f32", "v_rcp_f32", "v_rsq_f32", "v_sqrt_f32", "v_sin_f32", "v_cos_f32")

_reg_re = re.compile(r"^(-|abs\()?([vas])(\d+)\)?$")
_rng_re = re.compile(r"^(-)?([vas])\[(\d+):(\d+)\]$")


def parse_operand(tok):
    tok = tok.strip()
    m = _reg_re.match(tok)
    if m:
        k, i = m.group(2), int(m.group(3))
        if k == "a":
            return [("v", 256 + i)]
        return [(k, i)]
    m = _rng_re.match(tok)
    if m:
        k, a, b = m.group(2), int(m.group(3)), int(m.group(4))
        off = 256 if k == "a" else 0
        kk = "v" if k == "a" else k
        return [(kk, off + i) for i in range(a, b + 1)]
    if tok == "vcc":
        return [("s", 106), ("s", 107)]
    if tok == "exec":
        return [("s", 126), ("s", 127)]
    if tok == "m0":
        return [("s", 124)]
    if tok in ("vcc_lo",):
        return [("s", 106)]
    if tok in ("vcc_hi",):
        return [("s", 107)]
    return []


class Ins:
    __slots__ = ("text", "op", "cls", "wr", "rd", "passes", "srcC", "srcAB", "wide_store", "is_trans", "dpp", "lds_dma", "states")


def classify(text):
    t = text.split(";")[0].strip()
    ins = Ins()
    ins.text = text
    ins.wr = []
    ins.rd = []
    ins.passes = 0
    ins.srcC = []
    ins.srcAB = []
    ins.wide_store = False
    ins.is_trans = False
    ins.dpp = False
    ins.lds_dma = False
    ins.states = 1
    if not t or t.endswith(":") or t.startswith("."):
        ins.cls = "none"
        ins.op = ""
        ins.states = 0
        return ins
    sp = t.split(None, 1)
    op = sp[0]
    ins.op = op
    rest = sp[1] if len(sp) > 1 else ""
    qp = ""
    if "quad_perm" in rest:
        rest = re.sub(r"quad_perm:\[[^\]]*\]", "quad_perm", rest)
    ops = [o.strip() for o in rest.split(",")] if rest else []
    mods = ""
    if ops:
        last = ops[-1].split()
        if len(last) > 1:
            ops[-1] = last[0]
            mods = " ".join(last[1:])
        elif len(last) == 1 and not parse_operand(last[0]) and not re.match(r"^(-?[\d.]+|0x[0-9a-fA-F]+|off|[A-Za-z_.][\w.]*)$", last[0]):
            pass
    P = [parse_operand(o) for o in ops]
    if op == "s_nop":
        ins.cls = "salu"
        ins.states = int(ops[0], 0) + 1
        return ins
    if op.startswith("v_mfma"):
        ins.cls = "mfma"
        ins.passes = 8 if "32x32x16" in op else 4
        ins.wr = P[0]
        ins.srcAB = P[1] + P[2]
        ins.srcC = P[3]
        ins.rd = P[1] + P[2] + P[3]
        return ins
    if op.startswith("v_"):
        ins.cls = "valu"
        ins.is_trans = op.replace("_e32", "").replace("_e64", "") in TRANS
        if "quad_perm" in mods or "row_" in mods:
            ins.dpp = True
        if op.startswith("v_cmp"):
            ins.wr = P[0]
            ins.rd = sum(P[1:], [])
        elif op.startswith("v_permlane"):
            ins.wr = P[0] + P[1]
            ins.rd = P[0] + P[1]
        elif "_co_" in op:
            ins.wr = P[0] + P[1]
            ins.rd = sum(P[2:], [])
        elif op.startswith("v_fmac") or op.startswith("v_pk_fmac") or op.startswith("v_writelane"):
            ins.wr = P[0]
            ins.rd = sum(P, [])
        else:
            ins.wr = P[0]
            ins.rd = sum(P[1:], [])
        return ins
    if op.startswith("global_") or op.startswith("buffer_") or op.startswith("flat_"):
        ins.cls = "vmem"
        is_lds = ("lds" in mods.split()) or ("_lds_" in op)
        if is_lds:
            ins.lds_dma = True
            ins.rd = sum(P, []) + [("s", 124)]
        elif "load" in op:
            ins.wr = P[0]
            ins.rd = sum(P[1:], [])
        else:
            ins.rd = sum(P, [])
            if "x4" in op or "x3" in op:
                ins.wide_store = True
        return ins
    if op.startswith("ds_"):
        ins.cls = "ds"
        if op.startswith("ds_read") or op.startswith("ds_bpermute") or op.startswith("ds_swizzle") or op.startswith("ds_permute"):
            ins.wr = P[0]
            ins.rd = sum(P[1:], [])
        else:
            ins.rd = sum(P, [])
            if "b128" in op or "b96" in op:
                ins.wide_store = False
        return ins
    if op.startswith("s_"):
        ins.cls = "salu"
        if op.startswith("s_cmp") or op.startswith("s_cbranch") or op in ("s_branch", "s_barrier", "s_waitcnt", "s_endpgm", "s_setprio", "s_sleep"):
            ins.rd = sum(P, [])
        elif op.startswith("s_load"):
            ins.wr = P[0]
            ins.rd = sum(P[1:], [])
        elif "saveexec" in op:
            ins.wr = P[0] + [("s", 126), ("s", 127)]
            ins.rd = sum(P[1:], [])
        else:
            ins.wr = P[0] if P else []
            ins.rd = sum(P[1:], [])
        return ins
    raise ValueError("cannot classify: " + text)


def fix_hazards(lines):
    out = []
    pos = 0
    valu_wr = {}
    trans_wr = {}
    mfma_wr = {}
    mfma_c = {}
    store_rd = {}
    salu_m0 = -100
    for line in lines:
        ins = classify(line)
        if ins.cls == "none":
            out.append(line)
            continue
        need = 0

        def req(p, n):
            nonlocal need
            need = max(need, p + n + 1)

        rdv = [r for r in ins.rd if r[0] == "v"]
        wrv = [r for r in ins.wr if r[0] == "v"]
        rds = [r for r in ins.rd if r[0] == "s"]
        if ins.cls == "mfma":
            for r in rdv:
                if r in valu_wr:
                    req(valu_wr[r], 2)
            for r in ins.srcAB:
                if r in mfma_wr:
                    p, ps, D = mfma_wr[r]
                    req(p, 12 if ps == 8 else 8)
            for r in ins.srcC:
                if r in mfma_wr:
                    p, ps, D = mfma_wr[r]
                    if tuple(ins.srcC) == D and ps == ins.passes:
                        pass
                    else:
                        req(p, 10 if ps == 8 else 6)
            for r in wrv:
                if r in mfma_wr:
                    p, ps, D = mfma_wr[r]
                    if tuple(ins.wr) != D:
                        req(p, 12 if ps == 8 else 8)
        elif ins.cls == "valu":
            for r in rdv + wrv:
                if r in mfma_wr:
                    p, ps, D = mfma_wr[r]
                    req(p, 12 if ps == 8 else 8)
            for r in wrv:
                if r in mfma_c:
                    p, ps = mfma_c[r]
                    req(p, 7 if ps == 8 else 3)
                if r in store_rd:
                    req(store_rd[r], 2)
            if not ins.is_trans:
                for r in rdv:
                    if r in trans_wr:
                        req(trans_wr[r], 1)
            for r in rds:
                if r in valu_wr:
                    if ins.op.startswith("v_readlane") or ins.op.startswith("v_writelane"):
                        req(valu_wr[r], 4)
                    else:
                        req(valu_wr[r], 2)
            if ins.op.startswith("v_readlane") or ins.op.startswith("v_readfirstlane"):
                for r in rdv:
                    if r in valu_wr:
                        req(valu_wr[r], 1)
            if ins.op.startswith("v_permlane") or ins.dpp:
                for r in rdv:
                    if r in valu_wr:
                        req(valu_wr[r], 2)
        elif ins.cls in ("vmem", "ds"):
            for r in rdv + wrv:
                if r in mfma_wr:
                    p, ps, D = mfma_wr[r]
                    req(p, 12 if ps == 8 else 8)
            for r in wrv:
                if r in store_rd:
                    req(store_rd[r], 1)
            if ins.cls == "vmem":
                for r in rds:
                    if r in valu_wr:
                        req(valu_wr[r], 5)
                if ins.lds_dma:
                    req(salu_m0, 1)
        elif ins.cls == "salu":
            for r in rds:
                if r in valu_wr:
                    req(valu_wr[r], 1)
        gap = need - pos
        while gap > 0:
            n = min(gap, 16)
            out.append("    s_nop %d" % (n - 1))
            pos += n
            gap -= n
        here = pos
        out.append(line)
        pos += ins.states
        if ins.cls == "valu":
            for r in ins.wr:
                valu_wr[r] = here
                mfma_wr.pop(r, None)
                if ins.is_trans:
                    trans_wr[r] = here
                else:
                    trans_wr.pop(r, None)
        elif ins.cls == "mfma":
            D = tuple(ins.wr)
            for r in ins.wr:
                mfma_wr[r] = (here, ins.passes, D)
                valu_wr.pop(r, None)
                trans_wr.pop(r, None)
            for r in ins.srcC:
                mfma_c[r] = (here, ins.passes)
        elif ins.cls in ("vmem", "ds"):
            for r in ins.wr:
                valu_wr.pop(r, None)
                trans_wr.pop(r, None)
                mfma_wr.pop(r, None)
            if ins.wide_store:
                for r in rdv:
                    store_rd[r] = here
        elif ins.cls == "salu":
            for r in ins.wr:
                valu_wr.pop(r, None)
                if r == ("s", 124):
                    salu_m0 = here
    return out


class Kern:
    def __init__(self, name, vgpr=256, agpr=0, sgpr=102):
        self.name = name
        self.lines = []
        self.vgpr = vgpr
        self.agpr = agpr
        self.sgpr = sgpr
        self._lab = 0

    def __call__(self, s):
        for l in s.strip("\n").split("\n"):
            l = l.strip()
            if l:
                self.lines.append("    " + l if not l.endswith(":") else l)

    def newlabel(self, base="L"):
        self._lab += 1
        return "%s_%s_%d" % (base, self.name, self._lab)

    def label(self, name):
        self.lines.append(name + ":")

    def text(self):
        body = fix_hazards(self.lines)
        acc = (self.vgpr + 3) // 4 * 4
        nfv = acc + self.agpr if self.agpr else self.vgpr
        t = [".globl %s" % self.name, ".p2align 8", ".type %s,@function" % self.name, "%s:" % self.name]
        t += body
        kd = [".amdhsa_kernel %s" % self.name,
              "  .amdhsa_next_free_vgpr %d" % nfv,
              "  .amdhsa_next_free_sgpr %d" % self.sgpr,
              "  .amdhsa_accum_offset %d" % acc,
              "  .amdhsa_group_segment_fixed_size 0",
              "  .amdhsa_kernarg_size 104",
              "  .amdhsa_user_sgpr_count 2",
              "  .amdhsa_user_sgpr_kernarg_segment_ptr 1",
              "  .amdhsa_system_sgpr_workgroup_id_x 1",
              "  .amdhsa_float_denorm_mode_32 3",
              ".end_amdhsa_kernel"]
        return "\n".join(t) + "\n", "\n".join(kd) + "\n"
```

```python
import sys
from asmlib import Kern

from gencommon import *
from k1 import gen_k1
from k2 import gen_k2
from k3 import gen_k3
from k4 import gen_k4, gen_k5

def gen_k0():
    k = Kern("k0_mod_kernel", vgpr=64, sgpr=40)
    end = k.newlabel("end")
    zero = k.newlabel("zero")
    k(f"""s_load_dwordx2 s[4:5], s[0:1], {KA_C}
    s_load_dwordx2 s[6:7], s[0:1], {KA_WMOD}
    s_load_dwordx2 s[8:9], s[0:1], {KA_WS}
    s_waitcnt lgkmcnt(0)""")
    srd(k, 12, 4, 1152)
    srd(k, 16, 6, 576 * 6912)
    srd(k, 20, 8, WS_SIZE)
    k(f"""s_cmp_ge_u32 s2, 35
    s_cbranch_scc1 {end}
    s_cmp_ge_u32 s2, 27
    s_cbranch_scc1 {zero}""")
    k("""v_lshlrev_b32 v1, 1, v0
    buffer_load_ushort v2, v1, s[12:15], 0 offen
    s_waitcnt vmcnt(0)
    v_lshlrev_b32 v2, 16, v2
    v_mul_f32 v3, 0xbfb8aa3b, v2
    v_exp_f32 v3, v3
    v_add_f32 v3, 1.0, v3
    v_rcp_f32 v3, v3
    v_mul_f32 v3, v2, v3""")
    round1(k, 3, 4)
    k("""v_lshlrev_b32 v1, 2, v0
    ds_write_b32 v1, v3""")
    k("""v_and_b32 v5, 63, v0
    v_lshrrev_b32 v6, 6, v0
    s_lshl_b32 s24, s2, 8
    v_lshlrev_b32 v7, 2, v5
    v_add_u32 v7, s24, v7
    s_mov_b32 s25, 248832
    v_mul_lo_u32 v8, v6, s25
    v_add_u32 v7, v7, v8""")
    for i in range(36):
        if i % 1 == 0:
            k(f"s_mov_b32 s26, {i * 6912}")
        k(f"buffer_load_dword v{16+i}, v7, s[16:19], s26 offen")
    k("""s_waitcnt lgkmcnt(0)
    s_barrier
    v_mul_u32_u24 v9, 144, v6""")
    for i in range(9):
        k(f"ds_read_b128 v[{56}:{59}], v9 offset:{16*i}") if False else None
    k("v_mov_b32 v10, 0")
    k("v_mov_b32 v11, 0")
    for i in range(9):
        k(f"ds_read_b128 v[56:59], v9 offset:{16*i}")
        k(f"s_waitcnt lgkmcnt(0) vmcnt({35 - (4*i+3)})")
        for j in range(4):
            r = 16 + 4 * i + j
            k(f"v_lshlrev_b32 v12, 16, v{r}")
            k(f"v_and_b32 v13, 0xffff0000, v{r}")
            k(f"v_fmac_f32 v10, v12, v{56+j}")
            k(f"v_fmac_f32 v11, v13, v{56+j}")
    k("""v_lshlrev_b32 v12, 9, v6
    v_lshlrev_b32 v13, 3, v5
    v_add_u32 v12, v12, v13
    ds_write_b64 v12, v[10:11] offset:4096
    s_waitcnt lgkmcnt(0)
    s_barrier
    v_cmp_gt_u32 vcc, 128, v0
    s_and_saveexec_b64 s[28:29], vcc""")
    skip = k.newlabel("skip")
    k(f"s_cbranch_execz {skip}")
    k("v_lshlrev_b32 v12, 2, v0")
    for w in range(16):
        k(f"ds_read_b32 v{16+w}, v12 offset:{4096 + 512*w}")
    k("s_waitcnt lgkmcnt(0)")
    for w in range(1, 16):
        k(f"v_add_f32 v16, v16, v{16+w}")
    round1(k, 16, 17)
    k("""s_lshl_b32 s24, s2, 7
    v_add_u32 v13, s24, v0
    v_add_f32 v18, 1.0, v16""")
    round1(k, 18, 17)
    k("""v_subrev_u32 v19, 576, v13
    v_cmp_gt_u32 vcc, 576, v19
    s_mov_b64 s[30:31], vcc
    v_subrev_u32 v19, 0x900, v13
    v_cmp_gt_u32 vcc, 576, v19
    s_or_b64 vcc, vcc, s[30:31]
    v_cndmask_b32 v16, v16, v18, vcc
    v_lshlrev_b32 v13, 2, v13
    buffer_store_dword v16, v13, s[20:23], 0 offen""")
    k.label(skip)
    k(f"s_branch {end}")
    k.label(zero)
    k(f"""s_sub_u32 s24, s2, 27
    s_lshl_b32 s24, s24, 14
    s_add_u32 s24, s24, {WS_KV}
    v_lshlrev_b32 v1, 4, v0
    v_mov_b32 v4, 0
    v_mov_b32 v5, 0
    v_mov_b32 v6, 0
    v_mov_b32 v7, 0
    buffer_store_dwordx4 v[4:7], v1, s[20:23], s24 offen""")
    k.label(end)
    k("s_endpgm")
    return k, (35, 1, 1), 1024, 12288


def gen_ln(name, src_is_ws, src_off, mod_s, mod_c, dst_off):
    k = Kern(name, vgpr=128, sgpr=40)
    end = k.newlabel("end")
    k(f"""s_load_dwordx2 s[4:5], s[0:1], {KA_X}
    s_load_dwordx2 s[8:9], s[0:1], {KA_WS}
    s_waitcnt lgkmcnt(0)""")
    if src_is_ws:
        k(f"""s_add_u32 s4, s8, {src_off}
        s_addc_u32 s5, s9, 0""")
    srd(k, 12, 4, S * D * 2)
    srd(k, 20, 8, WS_SIZE)
    k(f"""s_cmp_ge_u32 s2, 256
    s_cbranch_scc1 {end}""")
    k("""v_lshrrev_b32 v1, 3, v0
    v_and_b32 v2, 7, v0
    s_lshl_b32 s24, s2, 3
    v_add_u32 v1, s24, v1
    v_mul_u32_u24 v3, 1152, v1
    v_lshlrev_b32 v4, 4, v2
    v_add_u32 v3, v3, v4""")
    for i in range(9):
        k(f"buffer_load_dwordx4 v[{8+4*i}:{11+4*i}], v3, s[12:15], 0 offen offset:{128*i}")
    k("s_waitcnt vmcnt(0)")
    X = 48
    for i in range(36):
        k(f"v_lshlrev_b32 v{X+2*i}, 16, v{8+i}")
        k(f"v_and_b32 v{X+2*i+1}, 0xffff0000, v{8+i}")
    k(f"v_add_f32 v5, v{X}, v{X+1}")
    for i in range(2, 72):
        k(f"v_add_f32 v5, v5, v{X+i}")

    def xreduce(r):
        k(f"v_add_f32_dpp v{r}, v{r}, v{r} quad_perm:[1,0,3,2] row_mask:0xf bank_mask:0xf")
        k(f"v_add_f32_dpp v{r}, v{r}, v{r} quad_perm:[2,3,0,1] row_mask:0xf bank_mask:0xf")
        k(f"v_add_f32_dpp v{r}, v{r}, v{r} row_half_mirror row_mask:0xf bank_mask:0xf")
    xreduce(5)
    k("v_mul_f32 v5, 0x3ae38e39, v5")
    k("v_mov_b32 v6, 0")
    for i in range(72):
        k(f"v_sub_f32 v7, v{X+i}, v5")
        k(f"v_fmac_f32 v6, v7, v7")
    xreduce(6)
    k("v_mul_f32 v6, 0x3ae38e39, v6")
    round2(k, 5, 6, 7)
    k("v_add_f32 v6, 0x3727c5ac, v6")
    round1(k, 6, 7)
    k("v_sqrt_f32 v6, v6")
    round1(k, 6, 7)
    k("v_rcp_f32 v6, v6")
    k(f"""v_lshlrev_b32 v4, 5, v2""")
    k(f"""v_lshrrev_b32 v120, 5, v1
    v_mul_u32_u24 v120, 36864, v120
    v_lshrrev_b32 v121, 1, v2
    v_lshlrev_b32 v121, 10, v121
    v_add_u32 v120, v120, v121
    v_and_b32 v121, 1, v2
    v_lshlrev_b32 v121, 9, v121
    v_add_u32 v120, v120, v121
    v_and_b32 v121, 31, v1
    v_lshlrev_b32 v121, 4, v121
    v_add_u32 v120, v120, v121
    v_add_u32 v120, {dst_off}, v120""")
    for i in range(9):
        oc = WS_MOD + (mod_c * 576 + 64 * i) * 4
        os_ = WS_MOD + (mod_s * 576 + 64 * i) * 4
        k(f"s_mov_b32 s26, {oc}")
        k(f"s_mov_b32 s27, {os_}")
        k(f"""buffer_load_dwordx4 v[8:11], v4, s[20:23], s26 offen
        buffer_load_dwordx4 v[12:15], v4, s[20:23], s26 offen offset:16
        buffer_load_dwordx4 v[16:19], v4, s[20:23], s27 offen
        buffer_load_dwordx4 v[20:23], v4, s[20:23], s27 offen offset:16""")
        for j in range(0, 8, 2):
            a, b = X + 8 * i + j, X + 8 * i + j + 1
            k(f"v_sub_f32 v{a}, v{a}, v5")
            k(f"v_sub_f32 v{b}, v{b}, v5")
            round2(k, a, b, 7)
            k(f"v_mul_f32 v{a}, v{a}, v6")
            k(f"v_mul_f32 v{b}, v{b}, v6")
            round2(k, a, b, 7)
        k("s_waitcnt vmcnt(0)")
        for j in range(0, 8, 2):
            a, b = X + 8 * i + j, X + 8 * i + j + 1
            k(f"v_mul_f32 v{a}, v{a}, v{8+j}")
            k(f"v_mul_f32 v{b}, v{b}, v{9+j}")
            round2(k, a, b, 7)
            k(f"v_add_f32 v{a}, v{a}, v{16+j}")
            k(f"v_add_f32 v{b}, v{b}, v{17+j}")
            k(f"v_cvt_pk_bf16_f32 v{24 + j//2}, v{a}, v{b}")
        k(f"buffer_store_dwordx4 v[24:27], v120, s[20:23], 0 offen offset:{(4096*i) % 4096}" if False else
          f"s_mov_b32 s28, {4096*i}")
        k(f"buffer_store_dwordx4 v[24:27], v120, s[20:23], s28 offen")
    k.label(end)
    k("s_endpgm")
    return k, (256, 1, 1), 64, 0


KERNELS = []


def build(which=None):
    ks = [gen_k0(),
          gen_ln("ln1_kernel", False, 0, 0, 1, WS_H1),
          gen_k1(), gen_k2(),
          gen_ln("ln2_kernel", True, WS_X1, 3, 4, WS_H2), gen_k3(), gen_k4(), gen_k5()]
    return ks


def emit(ks, path):
    hdr = []
    for k, grid, block, lds in ks:
        hdr.append(f"; @launch kernel={k.name} grid=({grid[0]},{grid[1]},{grid[2]}) block=({block},1,1) lds={lds}")
    txt = "\n".join(hdr) + "\n"
    txt += '.amdgcn_target "amdgcn-amd-amdhsa--gfx950"\n.text\n'
    kds = []
    for k, grid, block, lds in ks:
        t, kd = k.text()
        txt += t
        kds.append(kd)
    txt += '.section .rodata,"a"\n'
    for kd in kds:
        txt += ".p2align 6\n" + kd
    open(path, "w").write(txt)


if __name__ == "__main__":
    out = sys.argv[1] if len(sys.argv) > 1 else f"cdna_kernels/{NAME}.s"
    emit(build(), out)
    print("wrote", out)
```

```python
NAME = "adaLN_cond__linear_kernel_hedgehog__glu_gated_geglu__prompt"

S, D, H, DH, DF = 2048, 576, 32, 18, 4608
KA_X, KA_WQKV, KA_WPHI, KA_WO, KA_BX, KA_WG, KA_WU, KA_WD, KA_C, KA_WMOD, KA_OUT, KA_DBG, KA_WS = [8 * i for i in range(13)]
WS_SIZE = 268435456
WS_MOD = 0
WS_KV = 16384
KV_HEAD = 20 * 48 * 4
WS_H1 = 0x40000
FRAG_BYTES = 64 * 36 * 1024
WS_PHIQ = WS_H1 + FRAG_BYTES
WS_X1 = WS_PHIQ + 64 * 32 * 3 * 1024
WS_H2 = WS_X1 + S * D * 2
WS_H = WS_H2 + FRAG_BYTES
WS_PART = WS_H + 64 * 288 * 1024
WS_END = WS_PART + 8 * 64 * 18 * 4096

LOG2E = 0x3FB8AA3B


def srd(k, sd, sp, size):
    k(f"""s_mov_b32 s{sd}, s{sp}
    s_and_b32 s{sd+1}, s{sp+1}, 0xffff
    s_mov_b32 s{sd+2}, {size}
    s_mov_b32 s{sd+3}, 0x00020000""")


def round2(k, a, b, tmp):
    k(f"v_cvt_pk_bf16_f32 v{tmp}, v{a}, v{b}")
    k(f"v_lshlrev_b32 v{a}, 16, v{tmp}")
    k(f"v_and_b32 v{b}, 0xffff0000, v{tmp}")


def round1(k, a, tmp):
    k(f"v_cvt_pk_bf16_f32 v{tmp}, v{a}, v{a}")
    k(f"v_lshlrev_b32 v{a}, 16, v{tmp}")
```

```python
from asmlib import Kern
from gencommon import *

def softmax_pm(k, P, F0, F1, FX, T):
    t = T
    for r in range(0, 10, 2):
        round2(k, P + r, P + r + 1, t)
    q8, q9, mx, mn, m2 = T + 1, T + 2, T + 3, T + 4, T + 5
    EP, EN = T + 6, T + 16
    sp, sn = T + 26, T + 27
    k(f"v_cndmask_b32 v{q8}, v{P+8}, v{P}, s[30:31]")
    k(f"v_cndmask_b32 v{q9}, v{P+9}, v{P}, s[30:31]")
    k(f"v_max3_f32 v{mx}, v{P}, v{P+1}, v{P+2}")
    k(f"v_min3_f32 v{mn}, v{P}, v{P+1}, v{P+2}")
    k(f"v_max3_f32 v{mx}, v{mx}, v{P+3}, v{P+4}")
    k(f"v_min3_f32 v{mn}, v{mn}, v{P+3}, v{P+4}")
    k(f"v_max3_f32 v{mx}, v{mx}, v{P+5}, v{P+6}")
    k(f"v_min3_f32 v{mn}, v{mn}, v{P+5}, v{P+6}")
    k(f"v_max3_f32 v{mx}, v{mx}, v{P+7}, v{q8}")
    k(f"v_min3_f32 v{mn}, v{mn}, v{P+7}, v{q8}")
    k(f"v_max_f32 v{mx}, v{mx}, v{q9}")
    k(f"v_min_f32 v{mn}, v{mn}, v{q9}")
    k(f"v_mov_b32 v{m2}, v{mx}")
    k(f"v_permlane32_swap_b32 v{mx}, v{m2}")
    k(f"v_max_f32 v{mx}, v{mx}, v{m2}")
    k(f"v_mov_b32 v{m2}, v{mn}")
    k(f"v_permlane32_swap_b32 v{mn}, v{m2}")
    k(f"v_min_f32 v{mn}, v{mn}, v{m2}")
    for r in range(10):
        k(f"v_sub_f32 v{EP+r}, v{P+r}, v{mx}")
        k(f"v_sub_f32 v{EN+r}, v{mn}, v{P+r}")
        k(f"v_mul_f32 v{EP+r}, {LOG2E}, v{EP+r}")
        k(f"v_mul_f32 v{EN+r}, {LOG2E}, v{EN+r}")
        k(f"v_exp_f32 v{EP+r}, v{EP+r}")
        k(f"v_exp_f32 v{EN+r}, v{EN+r}")
    for r in (8, 9):
        k(f"v_cndmask_b32 v{EP+r}, v{EP+r}, 0, s[30:31]")
        k(f"v_cndmask_b32 v{EN+r}, v{EN+r}, 0, s[30:31]")
    k(f"v_add_f32 v{sp}, v{EP}, v{EP+1}")
    k(f"v_add_f32 v{sn}, v{EN}, v{EN+1}")
    for r in range(2, 10):
        k(f"v_add_f32 v{sp}, v{sp}, v{EP+r}")
        k(f"v_add_f32 v{sn}, v{sn}, v{EN+r}")
    k(f"v_mov_b32 v{m2}, v{sp}")
    k(f"v_permlane32_swap_b32 v{sp}, v{m2}")
    k(f"v_add_f32 v{sp}, v{sp}, v{m2}")
    k(f"v_mov_b32 v{m2}, v{sn}")
    k(f"v_permlane32_swap_b32 v{sn}, v{m2}")
    k(f"v_add_f32 v{sn}, v{sn}, v{m2}")
    k(f"v_rcp_f32 v{sp}, v{sp}")
    k(f"v_rcp_f32 v{sn}, v{sn}")
    for r in range(10):
        k(f"v_mul_f32 v{EP+r}, v{EP+r}, v{sp}")
        k(f"v_mul_f32 v{EN+r}, v{EN+r}, v{sn}")
    for q in range(4):
        k(f"v_cvt_pk_bf16_f32 v{F0+q}, v{EP+2*q}, v{EP+2*q+1}")
        k(f"v_cvt_pk_bf16_f32 v{F1+q}, v{EN+2*q}, v{EN+2*q+1}")
    k(f"v_cvt_pk_bf16_f32 v{FX}, v{EP+8}, v{EP+9}")
    k(f"v_cvt_pk_bf16_f32 v{FX+1}, v{EN+8}, v{EN+9}")
    k(f"v_mov_b32 v{FX+2}, 0")
    k(f"v_mov_b32 v{FX+3}, 0")


def pack16(k, src, d0, d1):
    for q in range(4):
        k(f"v_cvt_pk_bf16_f32 v{d0+q}, v{src+2*q}, v{src+2*q+1}")
    for q in range(4):
        k(f"v_cvt_pk_bf16_f32 v{d1+q}, v{src+8+2*q}, v{src+8+2*q+1}")


def gen_k1():
    k = Kern("k1_qkv_kernel", vgpr=224, sgpr=48)
    end = k.newlabel("end")
    LDS_KV = 110592
    k(f"""s_load_dwordx2 s[4:5], s[0:1], {KA_WQKV}
    s_load_dwordx2 s[6:7], s[0:1], {KA_WPHI}
    s_load_dwordx2 s[8:9], s[0:1], {KA_WS}
    s_waitcnt lgkmcnt(0)""")
    srd(k, 12, 4, 576 * 3456)
    srd(k, 16, 6, 32 * 648)
    srd(k, 20, 8, WS_SIZE)
    k(f"""s_cmp_ge_u32 s2, 256
    s_cbranch_scc1 {end}
    s_and_b32 s24, s2, 31
    s_lshr_b32 s25, s2, 5
    v_lshrrev_b32 v1, 6, v0
    v_and_b32 v2, 63, v0
    s_mov_b32 s30, 0
    s_mov_b32 s31, -1
    v_readfirstlane_b32 s26, v1""")
    k("""v_mul_u32_u24 v3, 43, v2
    v_lshrrev_b32 v3, 9, v3
    v_mul_u32_u24 v4, 12, v3
    v_sub_u32 v4, v2, v4
    v_lshrrev_b32 v5, 2, v4
    v_and_b32 v4, 3, v4
    v_mul_u32_u24 v3, 3456, v3
    v_mul_u32_u24 v5, 1152, v5
    v_add_u32 v3, v3, v5
    v_lshlrev_b32 v4, 4, v4
    v_add_u32 v3, v3, v4
    s_mul_i32 s27, s24, 36
    v_add_u32 v3, s27, v3
    s_mul_i32 s28, s26, 13824
    s_mul_i32 s29, s26, 768
    s_mov_b32 exec_lo, -1
    s_mov_b32 exec_hi, 0xffff""")
    for i in range(36):
        k(f"s_mov_b32 m0, s29")
        k(f"buffer_load_dwordx4 v3, s[12:15], s28 offen lds")
        if i != 35:
            k("s_add_u32 s28, s28, 55296")
            k("s_add_u32 s29, s29, 3072")
    k("s_mov_b64 exec, -1")
    k(f"""v_mov_b32 v4, 0
    v_mov_b32 v5, 0
    v_mov_b32 v6, 0
    v_mov_b32 v7, 0
    v_lshlrev_b32 v8, 4, v0
    v_add_u32 v8, {LDS_KV}, v8
    v_cmp_gt_u32 vcc, 240, v0
    s_and_saveexec_b64 s[34:35], vcc
    ds_write_b128 v8, v[4:7]
    s_mov_b64 exec, s[34:35]""")
    k("""v_and_b32 v4, 31, v2
    v_lshrrev_b32 v5, 5, v2
    s_mul_i32 s27, s24, 648
    v_lshlrev_b32 v6, 1, v4
    v_mul_u32_u24 v7, 144, v5
    v_add_u32 v6, v6, v7
    v_add_u32 v6, s27, v6
    v_cmp_gt_u32 vcc, 18, v4
    v_mov_b32 v7, 0x7fffffff
    v_cndmask_b32 v6, v7, v6, vcc""")
    for j in range(8):
        d = 8 * (j >> 2) + (j & 3)
        k(f"buffer_load_ushort v{16+j}, v6, s[16:19], 0 offen offset:{36*d}")
    k("""v_cndmask_b32 v8, v6, v7, s[30:31]
    buffer_load_ushort v24, v8, s[16:19], 0 offen offset:576
    buffer_load_ushort v25, v8, s[16:19], 0 offen offset:612""")
    k("""v_lshlrev_b32 v9, 2, v5
    v_sub_u32 v9, v4, v9
    v_mov_b32 v10, 0x3f80
    v_mov_b32 v11, 0x3f800000""")
    consts = [0, 1, 2, 3, 8, 9, 10, 11]
    for q in range(4):
        k(f"v_cmp_eq_u32 vcc, {consts[2*q]}, v9")
        k(f"v_cndmask_b32 v{80+q}, 0, v10, vcc")
        k(f"v_cmp_eq_u32 vcc, {consts[2*q+1]}, v9")
        k(f"v_cndmask_b32 v12, 0, v11, vcc")
        k(f"v_or_b32 v{80+q}, v{80+q}, v12")
    k("""v_cmp_eq_u32 vcc, 16, v2
    v_cndmask_b32 v84, 0, v10, vcc
    v_cmp_eq_u32 vcc, 17, v2
    v_cndmask_b32 v12, 0, v11, vcc
    v_or_b32 v84, v84, v12
    v_mov_b32 v85, 0
    v_mov_b32 v86, 0
    v_mov_b32 v87, 0
    v_mov_b32 v88, 0
    v_mov_b32 v89, v84
    v_mov_b32 v90, 0
    v_mov_b32 v91, 0
    v_cmp_eq_u32 s[32:33], 18, v4""")
    k("s_waitcnt vmcnt(0)")
    for q in range(4):
        k(f"v_lshl_or_b32 v{72+q}, v{17+2*q}, 16, v{16+2*q}")
    k("""v_lshl_or_b32 v76, v25, 16, v24
    v_mov_b32 v77, 0
    v_mov_b32 v78, 0
    v_mov_b32 v79, 0""")
    k(f"""v_lshlrev_b32 v13, 4, v2
    s_lshl_b32 s36, s25, 3
    s_lshl_b32 s37, s26, 1
    s_add_u32 s36, s36, s37
    s_mul_i32 s37, s36, 36864
    s_add_u32 s37, s37, {WS_H1}
    s_add_u32 s38, s37, 36864""")
    BR = 16
    AF = 48

    def bload(s):
        sl = s % 4
        if s % 4 == 0 and s > 0:
            k("s_add_u32 s37, s37, 4096")
            k("s_add_u32 s38, s38, 4096")
        k(f"buffer_load_dwordx4 v[{BR+8*sl}:{BR+8*sl+3}], v13, s[20:23], s37 offen offset:{1024*(s%4)}")
        k(f"buffer_load_dwordx4 v[{BR+8*sl+4}:{BR+8*sl+7}], v13, s[20:23], s38 offen offset:{1024*(s%4)}")
    k("""v_and_b32 v3, 15, v2
    v_lshrrev_b32 v6, 2, v3
    v_and_b32 v3, 3, v3
    v_lshlrev_b32 v7, 3, v5
    v_add_u32 v6, v6, v7
    v_mul_u32_u24 v6, 192, v6
    v_lshlrev_b32 v3, 3, v3
    v_add_u32 v6, v6, v3
    v_lshrrev_b32 v7, 4, v2
    v_and_b32 v7, 1, v7
    v_lshlrev_b32 v7, 5, v7
    v_add_u32 v14, v6, v7
    v_add_u32 v15, 61440, v14""")

    def aread(s):
        buf = s % 2
        base, off0 = (14, 3072 * s) if s < 20 else (15, 3072 * s - 61440)
        for w in range(3):
            for rd in range(2):
                r = AF + 12 * buf + 4 * w + 2 * rd
                k(f"ds_read_b64_tr_b16 v[{r}:{r+1}], v{base} offset:{off0 + 768*rd + 64*w}")
    for s in range(4):
        bload(s)
    for r in range(128, 224):
        k(f"v_mov_b32 v{r}, 0")
    k("s_waitcnt lgkmcnt(0)")
    k("s_barrier")
    aread(0)
    QT, KT, VV = 128, 160, 192
    for s in range(36):
        if s + 1 < 36:
            aread(s + 1)
        nb = 0
        if s + 4 < 36:
            pass
        lg = 6 if s + 1 < 36 else 0
        outstanding_after = min(35, s + 3) - s
        k(f"s_waitcnt vmcnt({2*outstanding_after}) lgkmcnt({lg})")
        sl = s % 4
        buf = s % 2
        for u in range(2):
            b = BR + 8 * sl + 4 * u
            aq, ak, av = AF + 12 * buf, AF + 12 * buf + 4, AF + 12 * buf + 8
            k(f"v_mfma_f32_32x32x16_bf16 v[{QT+16*u}:{QT+16*u+15}], v[{aq}:{aq+3}], v[{b}:{b+3}], v[{QT+16*u}:{QT+16*u+15}]")
            k(f"v_mfma_f32_32x32x16_bf16 v[{KT+16*u}:{KT+16*u+15}], v[{ak}:{ak+3}], v[{b}:{b+3}], v[{KT+16*u}:{KT+16*u+15}]")
            k(f"v_mfma_f32_32x32x16_bf16 v[{VV+16*u}:{VV+16*u+15}], v[{b}:{b+3}], v[{av}:{av+3}], v[{VV+16*u}:{VV+16*u+15}]")
        if s + 4 < 36:
            bload(s + 4)
    KVP, KVN = 96, 112
    P = 16
    FA, FB = 32, 36
    F0, F1, FX = 40, 44, 48
    T = 52
    T = 224 - 0
    FA, FB = 60, 64
    F0, F1, FX = 68, 92, 0
    T = 32
    FXr = 60
    k(f"""s_lshl_b32 s36, s25, 3
    s_lshl_b32 s39, s26, 1
    s_add_u32 s36, s36, s39
    s_lshl_b32 s36, s36, 5
    s_add_u32 s36, s36, s24
    s_mul_i32 s36, s36, 3072
    s_add_u32 s36, s36, {WS_PHIQ}""")
    for r in range(KVP, KVP + 32):
        k(f"v_mov_b32 v{r}, 0")
    for u in range(2):
        pack16(k, QT + 16 * u, FA, FB)
        k(f"v_mfma_f32_32x32x16_bf16 v[{P}:{P+15}], v[72:75], v[{FA}:{FA+3}], 0")
        k(f"v_mfma_f32_32x32x16_bf16 v[{P}:{P+15}], v[76:79], v[{FB}:{FB+3}], v[{P}:{P+15}]")
        softmax_pm(k, P, F0, F1, FXr, T)
        if u == 1:
            k("s_add_u32 s36, s36, 98304")
        k(f"buffer_store_dwordx4 v[{F0}:{F0+3}], v13, s[20:23], s36 offen")
        k(f"buffer_store_dwordx4 v[{F1}:{F1+3}], v13, s[20:23], s36 offen offset:1024")
        k(f"buffer_store_dwordx4 v[{FXr}:{FXr+3}], v13, s[20:23], s36 offen offset:2048")
        pack16(k, KT + 16 * u, FB, P)
        k(f"v_mov_b32 v{T}, v{P}")
        k(f"v_mov_b32 v{T+1}, v{P+1}")
        k(f"v_mov_b32 v{T+2}, v{P+2}")
        k(f"v_mov_b32 v{T+3}, v{P+3}")
        k(f"v_mfma_f32_32x32x16_bf16 v[{P}:{P+15}], v[72:75], v[{FB}:{FB+3}], 0")
        k(f"v_mfma_f32_32x32x16_bf16 v[{P}:{P+15}], v[76:79], v[{T}:{T+3}], v[{P}:{P+15}]")
        softmax_pm(k, P, F0, F1, FXr, T)
        TP, TN = P, T
        k(f"v_mfma_f32_32x32x16_bf16 v[{TP}:{TP+15}], v[{F0}:{F0+3}], v[80:83], 0")
        k(f"v_mfma_f32_32x32x16_bf16 v[{TN}:{TN+15}], v[{F1}:{F1+3}], v[80:83], 0")
        k(f"v_mfma_f32_32x32x16_bf16 v[{TP}:{TP+15}], v[{FXr}:{FXr+3}], v[84:87], v[{TP}:{TP+15}]")
        k(f"v_mfma_f32_32x32x16_bf16 v[{TN}:{TN+15}], v[{FXr}:{FXr+3}], v[88:91], v[{TN}:{TN+15}]")
        V0, V1 = 48, 52
        pack16(k, VV + 16 * u, V0, V1)
        k("v_mov_b32 v56, 0x3f803f80")
        for q in range(8):
            k(f"v_cndmask_b32 v{V0+q}, v{V0+q}, v56, s[32:33]")
        pack16(k, TP, 60, 64)
        pack16(k, TN, 68, 92)
        k(f"v_mfma_f32_32x32x16_bf16 v[{KVP}:{KVP+15}], v[60:63], v[{V0}:{V0+3}], v[{KVP}:{KVP+15}]")
        k(f"v_mfma_f32_32x32x16_bf16 v[{KVN}:{KVN+15}], v[68:71], v[{V0}:{V0+3}], v[{KVN}:{KVN+15}]")
        k(f"v_mfma_f32_32x32x16_bf16 v[{KVP}:{KVP+15}], v[64:67], v[{V1}:{V1+3}], v[{KVP}:{KVP+15}]")
        k(f"v_mfma_f32_32x32x16_bf16 v[{KVN}:{KVN+15}], v[92:95], v[{V1}:{V1+3}], v[{KVN}:{KVN+15}]")
    k(f"""v_mul_u32_u24 v3, 192, v4
    v_lshlrev_b32 v6, 5, v5
    v_add_u32 v3, v3, v6
    v_add_u32 v3, {LDS_KV}, v3
    s_mov_b32 exec_lo, 0x7ffff
    s_mov_b32 exec_hi, 0x7ffff""")
    for r in range(8):
        k(f"ds_add_f32 v3, v{KVP+r} offset:{4*r}")
        k(f"ds_add_f32 v3, v{KVN+r} offset:{64+4*r}")
    k("s_mov_b32 exec_hi, 0")
    k(f"ds_add_f32 v3, v{KVP+8} offset:128")
    k(f"ds_add_f32 v3, v{KVP+9} offset:132")
    k(f"ds_add_f32 v3, v{KVN+8} offset:136")
    k(f"ds_add_f32 v3, v{KVN+9} offset:140")
    k(f"""s_mov_b64 exec, -1
    s_waitcnt lgkmcnt(0)
    s_barrier
    v_lshlrev_b32 v3, 2, v0
    v_add_u32 v6, {LDS_KV}, v3
    s_mul_i32 s36, s24, {KV_HEAD}
    s_add_u32 s36, s36, {WS_KV}""")
    for j in range(3):
        k(f"ds_read_b32 v{16+j}, v6 offset:{1024*j}")
    k("v_cmp_gt_u32 vcc, 192, v0")
    k("s_and_saveexec_b64 s[34:35], vcc")
    sk = k.newlabel("skip")
    k(f"s_cbranch_execz {sk}")
    k(f"ds_read_b32 v19, v6 offset:3072")
    k("s_waitcnt lgkmcnt(0)")
    k(f"buffer_atomic_add_f32 v19, v3, s[20:23], s36 offen offset:3072")
    k.label(sk)
    k("s_mov_b64 exec, s[34:35]")
    k("s_waitcnt lgkmcnt(0)")
    for j in range(3):
        k(f"buffer_atomic_add_f32 v{16+j}, v3, s[20:23], s36 offen offset:{1024*j}")
    k.label(end)
    k("s_endpgm")
    return k, (256, 1, 1), 256, LDS_KV + 3840
```

```python
from asmlib import Kern
from gencommon import *


def gen_k2():
    k = Kern("k2_attn_kernel", vgpr=160, sgpr=48)
    end = k.newlabel("end")
    LDS_KV = 73728
    k(f"""s_load_dwordx2 s[4:5], s[0:1], {KA_WO}
    s_load_dwordx2 s[6:7], s[0:1], {KA_X}
    s_load_dwordx2 s[8:9], s[0:1], {KA_WS}
    s_waitcnt lgkmcnt(0)""")
    srd(k, 12, 4, 576 * 1152)
    srd(k, 16, 6, S * D * 2)
    srd(k, 20, 8, WS_SIZE)
    k(f"""s_cmp_ge_u32 s2, 144
    s_cbranch_scc1 {end}
    s_mul_i32 s25, s2, 7282
    s_lshr_b32 s25, s25, 16
    s_mul_i32 s24, s25, 9
    s_sub_u32 s24, s2, s24
    v_lshrrev_b32 v1, 6, v0
    v_and_b32 v2, 63, v0
    v_readfirstlane_b32 s26, v1
    v_and_b32 v4, 31, v2
    v_lshrrev_b32 v5, 5, v2""")
    k("""v_lshrrev_b32 v3, 2, v2
    v_mul_u32_u24 v3, 1152, v3
    v_and_b32 v6, 3, v2
    v_lshlrev_b32 v6, 4, v6
    v_add_u32 v3, v3, v6
    s_lshl_b32 s27, s24, 7
    v_add_u32 v3, s27, v3
    v_add_u32 v6, 64, v3
    s_mul_i32 s28, s26, 18432
    s_lshl_b32 s29, s26, 10""")
    for i in range(9):
        k("s_mov_b32 m0, s29")
        k("buffer_load_dwordx4 v3, s[12:15], s28 offen lds")
        k("s_add_u32 s30, s29, 36864")
        k("s_mov_b32 m0, s30")
        k("buffer_load_dwordx4 v6, s[12:15], s28 offen lds")
        if i != 8:
            k("s_add_u32 s28, s28, 73728")
            k("s_add_u32 s29, s29, 4096")
    k(f"""v_lshlrev_b32 v7, 4, v0
    v_lshlrev_b32 v8, 3, v0
    v_add_u32 v8, {LDS_KV}, v8
    s_mov_b32 s31, {WS_KV}""")
    for c in range(3):
        for i in range(10):
            ii = c * 10 + i
            k(f"s_mov_b32 s31, {WS_KV + 4096*ii}")
            k(f"buffer_load_dwordx4 v[{16+4*i}:{19+4*i}], v7, s[20:23], s31 offen")
        for i in range(10):
            ii = c * 10 + i
            k(f"s_waitcnt vmcnt({9-i})")
            k(f"v_cvt_pk_bf16_f32 v{16+4*i}, v{16+4*i}, v{17+4*i}")
            k(f"v_cvt_pk_bf16_f32 v{17+4*i}, v{18+4*i}, v{19+4*i}")
            k(f"ds_write_b64 v8, v[{16+4*i}:{17+4*i}] offset:{2048*ii}")
    k(f"""v_cmp_gt_u32 vcc, 19, v4
    v_mov_b32 v9, 19
    v_cndmask_b32 v9, v9, v4, vcc
    v_cmp_eq_u32 vcc, 22, v4
    v_cndmask_b32 v9, v9, 18, vcc
    v_mul_u32_u24 v9, 96, v9
    v_lshlrev_b32 v10, 4, v5
    v_add_u32 v9, v9, v10
    v_add_u32 v9, {LDS_KV}, v9""")
    k("""v_and_b32 v3, 15, v2
    v_lshrrev_b32 v6, 2, v3
    v_and_b32 v3, 3, v3
    v_lshlrev_b32 v3, 3, v3
    v_lshrrev_b32 v7, 4, v2
    v_and_b32 v7, 1, v7
    v_lshlrev_b32 v7, 5, v7
    v_add_u32 v3, v3, v7
    v_lshlrev_b32 v7, 2, v5
    v_add_u32 v7, v7, v6
    v_lshlrev_b32 v7, 6, v7
    v_add_u32 v10, v3, v7
    v_add_u32 v11, 36864, v10
    v_lshrrev_b32 v7, 1, v6
    v_mul_u32_u24 v7, 18, v7
    v_and_b32 v8, 1, v6
    v_add_u32 v7, v7, v8
    v_lshlrev_b32 v7, 6, v7
    v_add_u32 v12, v3, v7
    v_add_u32 v14, 36864, v12
    v_lshlrev_b32 v13, 4, v2""")
    k(f"""s_lshl_b32 s36, s25, 2
    s_add_u32 s36, s36, s26
    s_mul_i32 s37, s36, 98304
    s_add_u32 s37, s37, {WS_PHIQ}""")
    PH = 16
    KA = 52
    WA = 64
    D3 = 72
    OF = 88
    OX = 92
    TM = 96
    ACC = 112

    def phload(h):
        sl = h % 3
        k(f"s_add_u32 s38, s37, {3072*h}")
        for fr in range(3):
            r = PH + 12 * sl + 4 * fr
            k(f"buffer_load_dwordx4 v[{r}:{r+3}], v13, s[20:23], s38 offen offset:{1024*fr}")
    k("s_waitcnt vmcnt(0) lgkmcnt(0)")
    phload(0)
    phload(1)
    for r in range(ACC, ACC + 32):
        k(f"v_mov_b32 v{r}, 0")
    k("s_barrier")
    for h in range(32):
        if h + 2 < 32:
            phload(h + 2)
        for fr in range(3):
            k(f"ds_read_b128 v[{KA+4*fr}:{KA+4*fr+3}], v9 offset:{1920*h + 32*fr}")
        for t in range(2):
            for rd in range(2):
                r = WA + 4 * t + 2 * rd
                k(f"ds_read_b64_tr_b16 v[{r}:{r+1}], v{10+t} offset:{(18*h + 8*rd)*64}")
        infl = 3 * (min(31, h + 2) - h)
        k(f"s_waitcnt vmcnt({infl}) lgkmcnt(4)")
        sl = h % 3
        for fr in range(3):
            b = PH + 12 * sl + 4 * fr
            c = "0" if fr == 0 else f"v[{D3}:{D3+15}]"
            k(f"v_mfma_f32_32x32x16_bf16 v[{D3}:{D3+15}], v[{KA+4*fr}:{KA+4*fr+3}], v[{b}:{b+3}], {c}")
        for r in range(0, 10, 2):
            round2(k, D3 + r, D3 + r + 1, TM)
        round1(k, D3 + 10, TM)
        k(f"v_add_f32 v{D3+10}, 0x358637bd, v{D3+10}")
        round1(k, D3 + 10, TM)
        k(f"v_rcp_f32 v{D3+10}, v{D3+10}")
        for r in range(10):
            k(f"v_mul_f32 v{D3+r}, v{D3+r}, v{D3+10}")
        for q in range(4):
            k(f"v_cvt_pk_bf16_f32 v{OF+q}, v{D3+2*q}, v{D3+2*q+1}")
        k(f"v_cvt_pk_bf16_f32 v{OX + h%4}, v{D3+8}, v{D3+9}")
        k("s_waitcnt lgkmcnt(0)")
        for t in range(2):
            k(f"v_mfma_f32_32x32x16_bf16 v[{ACC+16*t}:{ACC+16*t+15}], v[{WA+4*t}:{WA+4*t+3}], v[{OF}:{OF+3}], v[{ACC+16*t}:{ACC+16*t+15}]")
        if h % 4 == 3:
            g = h // 4
            for t in range(2):
                for rd in range(2):
                    r = WA + 4 * t + 2 * rd
                    k(f"ds_read_b64_tr_b16 v[{r}:{r+1}], v{12+2*t} offset:{(18*(4*g+2*rd)+16)*64}")
            k("s_waitcnt lgkmcnt(0)")
            for t in range(2):
                k(f"v_mfma_f32_32x32x16_bf16 v[{ACC+16*t}:{ACC+16*t+15}], v[{WA+4*t}:{WA+4*t+3}], v[{OX}:{OX+3}], v[{ACC+16*t}:{ACC+16*t+15}]")
    k(f"""s_lshl_b32 s38, s36, 5
    v_add_u32 v3, s38, v4
    v_mul_u32_u24 v3, 1152, v3
    v_lshlrev_b32 v6, 3, v5
    v_add_u32 v3, v3, v6
    s_lshl_b32 s39, s24, 7
    v_add_u32 v3, s39, v3
    v_lshlrev_b32 v6, 4, v5
    s_lshl_b32 s39, s24, 8
    s_add_u32 s39, s39, {WS_MOD + 2*576*4}
    s_mov_b32 s40, {WS_X1}""")
    for t in range(2):
        for q in range(4):
            i = 4 * t + q
            k(f"buffer_load_dwordx4 v[{16+4*i}:{19+4*i}], v6, s[20:23], s39 offen offset:{128*t + 32*q}")
            k(f"buffer_load_dwordx2 v[{48+2*i}:{49+2*i}], v3, s[16:19], 0 offen offset:{64*t + 16*q}")
    k("s_waitcnt vmcnt(0)")
    for t in range(2):
        for q in range(4):
            i = 4 * t + q
            a = ACC + 16 * t + 4 * q
            g = 16 + 4 * i
            x = 48 + 2 * i
            round2(k, a, a + 1, TM)
            round2(k, a + 2, a + 3, TM)
            for e in range(4):
                k(f"v_mul_f32 v{a+e}, v{a+e}, v{g+e}")
            round2(k, a, a + 1, TM)
            round2(k, a + 2, a + 3, TM)
            k(f"v_lshlrev_b32 v{TM}, 16, v{x}")
            k(f"v_and_b32 v{TM+1}, 0xffff0000, v{x}")
            k(f"v_lshlrev_b32 v{TM+2}, 16, v{x+1}")
            k(f"v_and_b32 v{TM+3}, 0xffff0000, v{x+1}")
            for e in range(4):
                k(f"v_add_f32 v{a+e}, v{a+e}, v{TM+e}")
            k(f"v_cvt_pk_bf16_f32 v{x}, v{a}, v{a+1}")
            k(f"v_cvt_pk_bf16_f32 v{x+1}, v{a+2}, v{a+3}")
            k(f"buffer_store_dwordx2 v[{x}:{x+1}], v3, s[20:23], s40 offen offset:{64*t + 16*q}")
    k.label(end)
    k("s_endpgm")
    return k, (144, 1, 1), 256, LDS_KV + 61440
```

```python
from asmlib import Kern
from gencommon import *
import struct


def f2u(x):
    return struct.unpack('<I', struct.pack('<f', x))[0]


C0 = -2.0 * 0.7978845608028654 * 1.4426950408889634
C1 = C0 * 0.044715


def gelu_epilogue(A, T, PK, c0s, c1s):
    L = []
    for r in range(0, 16, 2):
        L.append(f"v_cvt_pk_bf16_f32 v{T + r//2}, v{A+r}, v{A+r+1}")
    for r in range(0, 16, 2):
        L.append(f"v_lshlrev_b32 v{A+r}, 16, v{T + r//2}")
        L.append(f"v_and_b32 v{A+r+1}, 0xffff0000, v{T + r//2}")
    for r in range(8):
        L.append(f"v_mul_f32 v{T+r}, v{A+r}, v{A+r}")
    for r in range(8):
        L.append(f"v_fma_f32 v{T+r}, v{T+r}, s{c1s}, v{PK+4}")
    for r in range(8):
        L.append(f"v_mul_f32 v{T+r}, v{T+r}, v{A+r}")
    for r in range(8):
        L.append(f"v_exp_f32 v{T+r}, v{T+r}")
    for r in range(8):
        L.append(f"v_add_f32 v{T+r}, 1.0, v{T+r}")
    for r in range(8):
        L.append(f"v_rcp_f32 v{T+r}, v{T+r}")
    for r in range(8):
        L.append(f"v_mul_f32 v{A+r}, v{A+r}, v{T+r}")
    for r in range(0, 8, 2):
        L.append(f"v_cvt_pk_bf16_f32 v{T + r//2}, v{A+r}, v{A+r+1}")
    for r in range(0, 8, 2):
        L.append(f"v_lshlrev_b32 v{A+r}, 16, v{T + r//2}")
        L.append(f"v_and_b32 v{A+r+1}, 0xffff0000, v{T + r//2}")
    for r in range(8):
        L.append(f"v_mul_f32 v{A+r}, v{A+r}, v{A+8+r}")
    for q in range(4):
        L.append(f"v_cvt_pk_bf16_f32 v{PK+q}, v{A+2*q}, v{A+2*q+1}")
    return L


def gen_k3():
    k = Kern("k3_gateup_kernel", vgpr=96, agpr=144, sgpr=56)
    end = k.newlabel("end")
    BUF = 73792
    UOFF = 36896
    k(f"""s_load_dwordx2 s[4:5], s[0:1], {KA_WG}
    s_load_dwordx2 s[6:7], s[0:1], {KA_WU}
    s_load_dwordx2 s[8:9], s[0:1], {KA_WS}
    s_waitcnt lgkmcnt(0)""")
    srd(k, 12, 4, 576 * 9216)
    srd(k, 16, 6, 576 * 9216)
    srd(k, 20, 8, WS_SIZE)
    k(f"""s_cmp_ge_u32 s2, 256
    s_cbranch_scc1 {end}
    s_and_b32 s24, s2, 15
    s_lshr_b32 s25, s2, 4
    v_lshrrev_b32 v1, 6, v0
    v_and_b32 v2, 63, v0
    v_readfirstlane_b32 s26, v1
    v_lshrrev_b32 v5, 5, v2""")
    k("""v_lshrrev_b32 v3, 2, v2
    v_mul_u32_u24 v3, 9216, v3
    v_and_b32 v6, 3, v2
    v_lshlrev_b32 v6, 4, v6
    v_add_u32 v3, v3, v6
    s_mul_i32 s28, s26, 147456
    s_mul_i32 s27, s24, 576
    s_add_u32 s28, s28, s27
    s_lshl_b32 s29, s26, 10""")

    def dma_list(st):
        L = []
        buf = st % 2
        for i in range(9):
            for mat in range(2):
                L.append([f"s_add_u32 m0, s29, {buf*BUF + mat*UOFF + i*4096}",
                          f"s_add_u32 s30, s28, {i*589824 + st*64}",
                          f"buffer_load_dwordx4 v3, s[{12+4*mat}:{15+4*mat}], s30 offen lds"])
        return L
    for grp in dma_list(0):
        for l in grp:
            k(l)
    k(f"""v_lshlrev_b32 v13, 4, v2
    s_lshl_b32 s36, s25, 2
    s_add_u32 s36, s36, s26
    s_mul_i32 s37, s36, 36864
    s_add_u32 s37, s37, {WS_H2}""")
    for s in range(36):
        if s % 4 == 0 and s:
            k("s_add_u32 s37, s37, 4096")
        k(f"buffer_load_dwordx4 a[{4*s}:{4*s+3}], v13, s[20:23], s37 offen offset:{1024*(s%4)}")
    for grp in dma_list(1):
        for l in grp:
            k(l)
    k(f"""v_and_b32 v7, 15, v2
    v_lshrrev_b32 v6, 2, v7
    v_and_b32 v7, 3, v7
    v_lshlrev_b32 v7, 3, v7
    v_lshlrev_b32 v8, 3, v5
    v_add_u32 v6, v6, v8
    v_lshlrev_b32 v6, 6, v6
    v_add_u32 v6, v6, v7
    v_lshrrev_b32 v7, 4, v2
    v_and_b32 v7, 1, v7
    v_mul_u32_u24 v7, {UOFF}, v7
    v_add_u32 v14, v6, v7
    v_add_u32 v15, {BUF}, v14
    s_mul_i32 s38, s36, {288*1024}
    s_mul_i32 s39, s24, {18*1024}
    s_add_u32 s38, s38, s39
    s_add_u32 s38, s38, {WS_H}
    s_mov_b32 s40, {f2u(C1)}
    v_mov_b32 v84, {f2u(C0)}""")
    AR = 16
    ACC = 32
    T = 64
    PK = 80

    def aread(gs):
        tile, s = divmod(gs, 36)
        st, t = divmod(tile, 2)
        base = 14 + st % 2
        sl = gs % 4
        for rd in range(2):
            r = AR + 4 * sl + 2 * rd
            k(f"ds_read_b64_tr_b16 v[{r}:{r+1}], v{base} offset:{(16*s + 4*rd)*64 + 32*t}")
    k(f"s_waitcnt vmcnt(18)")
    k("s_barrier")
    pend = []
    for tile in range(18):
        st, t = divmod(tile, 2)
        acc = ACC + 16 * (tile % 2)
        side = []
        if tile > 0:
            pa = ACC + 16 * ((tile - 1) % 2)
            side = gelu_epilogue(pa, T, PK, None, 40)
            side.append(f"s_add_u32 s41, s38, {1024*(tile-1)}")
            side.append(f"buffer_store_dwordx4 v[{PK}:{PK+3}], v13, s[20:23], s41 offen")
        dmas = []
        if t == 0 and 1 <= st <= 7:
            dmas = dma_list(st + 1)
        if t == 0:
            for j in range(3):
                aread(tile * 36 + j)
        for s in range(36):
            gs = tile * 36 + s
            nxt = gs + 3
            issue = (s + 3 < 36) or (t == 0)
            if issue:
                aread(nxt)
            if issue:
                infl = 6
            else:
                infl = 2 * (35 - s)
            k(f"s_waitcnt lgkmcnt({infl})")
            c = "0" if s == 0 else f"v[{acc}:{acc+15}]"
            sl = gs % 4
            k(f"v_mfma_f32_32x32x16_bf16 v[{acc}:{acc+15}], v[{AR+4*sl}:{AR+4*sl+3}], a[{4*s}:{4*s+3}], {c}")
            if s < 18 and dmas:
                for l in dmas.pop(0):
                    k(l)
            if s >= 2:
                n = -(-len(side) // max(1, (30 - s))) if s < 30 else len(side)
                for _ in range(min(n, len(side))):
                    k(side.pop(0))
        assert not side and not dmas
        if t == 1 and st < 8:
            k("s_waitcnt vmcnt(0)")
            k("s_barrier")
    pa = ACC + 16 * (17 % 2)
    for l in gelu_epilogue(pa, T, PK, None, 40):
        k(l)
    k(f"s_add_u32 s41, s38, {1024*17}")
    k(f"buffer_store_dwordx4 v[{PK}:{PK+3}], v13, s[20:23], s41 offen")
    k.label(end)
    k("s_endpgm")
    return k, (256, 1, 1), 256, 2 * BUF
```

```python
from asmlib import Kern
from gencommon import *


def gen_k4():
    k = Kern("k4_down_kernel", vgpr=200, agpr=144, sgpr=56)
    end = k.newlabel("end")
    SLAB = 36864
    k(f"""s_load_dwordx2 s[4:5], s[0:1], {KA_WD}
    s_load_dwordx2 s[8:9], s[0:1], {KA_WS}
    s_waitcnt lgkmcnt(0)""")
    srd(k, 12, 4, 4608 * 1152)
    srd(k, 20, 8, WS_SIZE)
    k(f"""s_cmp_ge_u32 s2, 256
    s_cbranch_scc1 {end}
    s_and_b32 s24, s2, 7
    s_lshr_b32 s25, s2, 3
    s_and_b32 s25, s25, 1
    s_lshr_b32 s33, s2, 4
    v_lshrrev_b32 v1, 6, v0
    v_and_b32 v2, 63, v0
    v_readfirstlane_b32 s26, v1
    v_lshrrev_b32 v5, 5, v2""")
    VO = 184
    for i in range(9):
        k(f"v_add_u32 v3, {64*i}, v2")
        k("v_mul_u32_u24 v6, 1821, v3")
        k("v_lshrrev_b32 v6, 16, v6")
        k("v_mul_u32_u24 v7, 36, v6")
        k("v_sub_u32 v7, v3, v7")
        k("v_mul_u32_u24 v6, 1152, v6")
        k("v_lshlrev_b32 v7, 4, v7")
        k(f"v_add_u32 v{VO+i}, v6, v7")
    k("""s_mul_i32 s28, s24, 663552
    s_mul_i32 s27, s25, 576
    s_add_u32 s28, s28, s27
    s_mul_i32 s27, s26, 18432
    s_add_u32 s28, s28, s27
    s_mul_i32 s29, s26, 9216""")

    def dma_list(sb):
        L = []
        for i in range(9):
            L.append([f"s_add_u32 m0, s29, {(sb % 4)*SLAB + i*1024}",
                      f"s_add_u32 s30, s28, {sb*73728}",
                      f"buffer_load_dwordx4 v{VO+i}, s[12:15], s30 offen lds"])
        return L
    for grp in dma_list(0):
        for l in grp:
            k(l)
    k(f"""v_lshlrev_b32 v13, 4, v2
    s_lshl_b32 s36, s33, 2
    s_add_u32 s36, s36, s26
    s_mul_i32 s37, s36, {288*1024}
    s_mul_i32 s27, s24, {36*1024}
    s_add_u32 s37, s37, s27
    s_add_u32 s37, s37, {WS_H}""")
    for s in range(36):
        if s % 4 == 0 and s:
            k("s_add_u32 s37, s37, 4096")
        k(f"buffer_load_dwordx4 a[{4*s}:{4*s+3}], v13, s[20:23], s37 offen offset:{1024*(s%4)}")
    for sb in (1, 2):
        for grp in dma_list(sb):
            for l in grp:
                k(l)
    k(f"""v_and_b32 v7, 15, v2
    v_lshrrev_b32 v6, 2, v7
    v_and_b32 v7, 3, v7
    v_lshlrev_b32 v7, 3, v7
    v_lshlrev_b32 v8, 2, v5
    v_add_u32 v6, v6, v8
    v_mul_u32_u24 v6, 576, v6
    v_add_u32 v6, v6, v7
    v_lshrrev_b32 v7, 4, v2
    v_and_b32 v7, 1, v7
    v_lshlrev_b32 v7, 5, v7
    v_add_u32 v9, v6, v7
    v_add_u32 v10, {SLAB}, v9
    v_add_u32 v11, {2*SLAB}, v9
    v_add_u32 v12, {3*SLAB}, v9""")
    AR = 16
    ACC = 40
    for r in range(ACC, ACC + 144):
        k(f"v_mov_b32 v{r}, 0")

    def aread(g):
        s, t = divmod(g, 9)
        sb, ss = divmod(s, 4)
        b = sb % 4
        base = 9 + b
        off = ss * 16 * 576 + 64 * t
        sl = g % 4
        for rd in range(2):
            r = AR + 4 * sl + 2 * rd
            k(f"ds_read_b64_tr_b16 v[{r}:{r+1}], v{base} offset:{off + rd*8*576}")
    k("s_waitcnt vmcnt(18)")
    k("s_barrier")
    NG = 36 * 9
    for sb in range(9):
        dmas = dma_list(sb + 3) if sb + 3 < 9 else []
        g0 = sb * 36
        for j in range(3):
            aread(g0 + j)
        for gi in range(36):
            g = g0 + gi
            s, t = divmod(g, 9)
            issue = gi + 3 < 36
            if issue:
                aread(g + 3)
            k(f"s_waitcnt lgkmcnt({6 if issue else 2*(35-gi)})")
            sl = g % 4
            acc = ACC + 16 * t
            k(f"v_mfma_f32_32x32x16_bf16 v[{acc}:{acc+15}], v[{AR+4*sl}:{AR+4*sl+3}], a[{4*s}:{4*s+3}], v[{acc}:{acc+15}]")
            if dmas and gi % 2 == 0:
                for l in dmas.pop(0):
                    k(l)
        if sb < 8:
            left = 9 * (min(8, sb + 3) - (sb + 1))
            k(f"s_waitcnt vmcnt({left})")
            k("s_barrier")
    k(f"""s_lshl_b32 s38, s24, 6
    s_add_u32 s38, s38, s36
    s_mul_i32 s38, s38, {18*4096}
    s_mul_i32 s27, s25, {9*4096}
    s_add_u32 s38, s38, s27
    s_add_u32 s38, s38, {WS_PART}""")
    for t in range(9):
        k(f"s_add_u32 s39, s38, {4096*t}")
        for q in range(4):
            a = ACC + 16 * t + 4 * q
            k(f"buffer_store_dwordx4 v[{a}:{a+3}], v13, s[20:23], s39 offen offset:{1024*q}")
    k.label(end)
    k("s_endpgm")
    return k, (256, 1, 1), 256, 4 * SLAB


def gen_k5():
    k = Kern("k5_reduce_kernel", vgpr=160, sgpr=48)
    end = k.newlabel("end")
    k(f"""s_load_dwordx2 s[4:5], s[0:1], {KA_OUT}
    s_load_dwordx2 s[8:9], s[0:1], {KA_WS}
    s_waitcnt lgkmcnt(0)""")
    srd(k, 12, 4, S * D * 2)
    srd(k, 20, 8, WS_SIZE)
    k(f"""s_cmp_ge_u32 s2, 288
    s_cbranch_scc1 {end}
    v_lshrrev_b32 v1, 6, v0
    v_and_b32 v2, 63, v0
    v_readfirstlane_b32 s26, v1
    v_and_b32 v4, 31, v2
    v_lshrrev_b32 v5, 5, v2
    s_lshl_b32 s24, s2, 2
    s_add_u32 s24, s24, s26
    s_mul_i32 s25, s24, 3641
    s_lshr_b32 s25, s25, 16
    s_mul_i32 s27, s25, 18
    s_sub_u32 s27, s24, s27
    v_lshlrev_b32 v13, 4, v2
    s_lshl_b32 s28, s24, 12
    s_add_u32 s28, s28, {WS_PART}""")
    for ks in range(8):
        for q in range(4):
            r = 16 + 16 * ks + 4 * q
            k(f"buffer_load_dwordx4 v[{r}:{r+3}], v13, s[20:23], s28 offen offset:{1024*q}")
        if ks < 7:
            k(f"s_add_u32 s28, s28, {64*18*4096}")
    k(f"""s_lshl_b32 s38, s25, 5
    v_add_u32 v3, s38, v4
    v_mul_u32_u24 v3, 1152, v3
    v_lshlrev_b32 v6, 3, v5
    v_add_u32 v3, v3, v6
    s_lshl_b32 s39, s27, 6
    v_add_u32 v3, s39, v3
    v_lshlrev_b32 v6, 4, v5
    s_lshl_b32 s39, s27, 7
    s_add_u32 s39, s39, {WS_MOD + 5*576*4}
    s_mov_b32 s40, {WS_X1}""")
    GB, XX, TM = 144, 8, 152
    for q in range(4):
        k(f"buffer_load_dwordx4 v[{GB+4*q}:{GB+4*q+3}], v6, s[20:23], s39 offen offset:{32*q}") if False else None
    k("s_waitcnt vmcnt(0)")
    for ks in range(1, 8):
        for r in range(16):
            k(f"v_add_f32 v{16+r}, v{16+r}, v{16+16*ks+r}")
    for q in range(4):
        k(f"buffer_load_dwordx4 v[{32+4*q}:{35+4*q}], v6, s[20:23], s39 offen offset:{32*q}")
        k(f"buffer_load_dwordx2 v[{48+2*q}:{49+2*q}], v3, s[20:23], s40 offen offset:{16*q}")
    k("s_waitcnt vmcnt(0)")
    TM = 60
    for q in range(4):
        a = 16 + 4 * q
        g = 32 + 4 * q
        x = 48 + 2 * q
        round2(k, a, a + 1, TM)
        round2(k, a + 2, a + 3, TM)
        for e in range(4):
            k(f"v_mul_f32 v{a+e}, v{a+e}, v{g+e}")
        round2(k, a, a + 1, TM)
        round2(k, a + 2, a + 3, TM)
        k(f"v_lshlrev_b32 v{TM}, 16, v{x}")
        k(f"v_and_b32 v{TM+1}, 0xffff0000, v{x}")
        k(f"v_lshlrev_b32 v{TM+2}, 16, v{x+1}")
        k(f"v_and_b32 v{TM+3}, 0xffff0000, v{x+1}")
        for e in range(4):
            k(f"v_add_f32 v{a+e}, v{a+e}, v{TM+e}")
        k(f"v_cvt_pk_bf16_f32 v{x}, v{a}, v{a+1}")
        k(f"v_cvt_pk_bf16_f32 v{x+1}, v{a+2}, v{a+3}")
        k(f"buffer_store_dwordx2 v[{x}:{x+1}], v3, s[12:15], 0 offen offset:{16*q}")
    k.label(end)
    k("s_endpgm")
    return k, (288, 1, 1), 256, 0
```

```python
from asmlib import Kern
from gencommon import *
def mk(name, n_unroll, iters, waves=4, valu=0):
    k = Kern(name, vgpr=128, sgpr=32)
    k("""v_and_b32 v2, 63, v0
    v_lshlrev_b32 v14, 3, v2""")
    for r in range(16, 128):
        k(f"v_mov_b32 v{r}, 0")
    k(f"s_mov_b32 s4, {iters}")
    L = "loop_" + name
    k.label(L)
    for i in range(n_unroll):
        sl = i % 4
        for rd in range(2):
            r = 16 + 8 * sl + 2 * rd
            k(f"ds_read_b64_tr_b16 v[{r}:{r+1}], v14 offset:{(i*2+rd)*512 % 32768}")
        k(f"s_waitcnt lgkmcnt(6)")
        s2 = (i + 1) % 4
        k(f"v_mfma_f32_32x32x16_bf16 v[64:79], v[{16+8*s2}:{19+8*s2}], v[48:51], v[64:79]")
        for j in range(valu):
            k(f"v_mul_f32 v{96+j}, v{96+j}, v{96+j}")
    k("s_sub_u32 s4, s4, 1")
    k("s_cmp_lg_u32 s4, 0")
    k(f"s_cbranch_scc1 {L}")
    k("s_endpgm")
    return k, (256, 1, 1), 64*waves, 40000
ks = [mk("mb_loop32_kernel", 32, 32), mk("mb_unroll1024_kernel", 1024, 1), mk("mb_w8loop_kernel", 32, 16, 8), mk("mb_w8v3_kernel", 32, 16, 8, 3), mk("mb_w8v6_kernel", 32, 16, 8, 6), mk("mb_w4v3_kernel", 32, 32, 4, 3)]
from gen import emit
emit(ks, "mb3.s")
```

```python
NAME = "adaLN_cond__linear_kernel_hedgehog__glu_gated_geglu__prompt"

S, D, H, DH, DF = 2048, 576, 32, 18, 4608
KA_X, KA_WQKV, KA_WPHI, KA_WO, KA_BX, KA_WG, KA_WU, KA_WD, KA_C, KA_WMOD, KA_OUT, KA_DBG, KA_WS = [8 * i for i in range(13)]
WS_SIZE = 268435456
WS_MOD = 0
WS_KV = 16384
KV_HEAD = 20 * 48 * 4
WS_MODB = 0x30000
WS_H1 = 0x40000
FRAG_BYTES = 64 * 36 * 1024
WS_PHIQ = WS_H1 + FRAG_BYTES
WS_X1 = WS_PHIQ + 64 * 32 * 3 * 1024
WS_H2 = WS_X1 + S * D * 2
WS_H = WS_H2 + FRAG_BYTES
WS_PART = WS_H + 64 * 288 * 1024
WS_WQKV = WS_PART + 8 * 64 * 18 * 4096
WS_WO = WS_WQKV + 32 * 576 * 192
WS_END = WS_WO + 18 * 576 * 64

LOG2E = 0x3FB8AA3B


def srd(k, sd, sp, size):
    k(f"""s_mov_b32 s{sd}, s{sp}
    s_and_b32 s{sd+1}, s{sp+1}, 0xffff
    s_mov_b32 s{sd+2}, {size}
    s_mov_b32 s{sd+3}, 0x00020000""")


def round2(k, a, b, tmp):
    k(f"v_cvt_pk_bf16_f32 v{tmp}, v{a}, v{b}")
    k(f"v_lshlrev_b32 v{a}, 16, v{tmp}")
    k(f"v_and_b32 v{b}, 0xffff0000, v{tmp}")


def round1(k, a, tmp):
    k(f"v_cvt_pk_bf16_f32 v{tmp}, v{a}, v{a}")
    k(f"v_lshlrev_b32 v{a}, 16, v{tmp}")


import os
STAMP_KERNEL = os.environ.get("STAMP", "")


class Stamps:
    def __init__(self, k, wave_sgpr, vtmp):
        self.k = k
        self.on = (STAMP_KERNEL == k.name)
        self.n = 0
        self.v = vtmp
        if self.on:
            k.sgpr = 102
            k.vgpr = max(k.vgpr, vtmp + 2)
            k(f"""s_lshl_b32 s96, s2, 4
            s_add_u32 s96, s96, s{wave_sgpr}
            s_lshl_b32 s96, s96, 7
            s_add_u32 s96, s96, {WS_END}""")
            self()

    def __call__(self):
        if not self.on:
            return
        k = self.k
        k("s_memtime s[94:95]")
        k("s_waitcnt lgkmcnt(0)")
        k(f"v_mov_b32 v{self.v}, s94")
        k(f"v_mov_b32 v{self.v+1}, 0")
        k(f"buffer_store_dword v{self.v}, v{self.v+1}, s[20:23], s96 offen offset:{4*self.n}")
        self.n += 1
```

```python
from asmlib import Kern
from gencommon import *
from k1 import softmax_pm, pack16


def gen_k1():
    k = Kern("k1_qkv_kernel", vgpr=200, sgpr=64)
    end = k.newlabel("end")
    LDS_KV = 110592
    k(f"""s_load_dwordx2 s[4:5], s[0:1], {KA_WQKV}
    s_load_dwordx2 s[6:7], s[0:1], {KA_WPHI}
    s_load_dwordx2 s[8:9], s[0:1], {KA_WS}
    s_waitcnt lgkmcnt(0)""")
    srd(k, 12, 4, 576 * 3456)
    srd(k, 16, 6, 32 * 648)
    srd(k, 20, 8, WS_SIZE)
    k(f"""s_cmp_ge_u32 s2, 256
    s_cbranch_scc1 {end}
    s_and_b32 s24, s2, 31
    s_lshr_b32 s25, s2, 5
    v_lshrrev_b32 v1, 6, v0
    v_and_b32 v2, 63, v0
    s_mov_b32 s30, 0
    s_mov_b32 s31, -1
    v_readfirstlane_b32 s26, v1""")
    stamp = Stamps(k, 26, 200)
    q = []

    def wait_n(tag):
        last = -1
        for i, t in enumerate(q):
            tt = t[1] if t[0] == "opt" else t
            if tt == tag:
                last = i
        n = sum(1 for t in q[last + 1:] if t[0] != "opt")
        del q[:last + 1]
        return n
    k(f"""v_lshlrev_b32 v13, 4, v2
    s_mul_i32 s28, s24, 110592
    s_add_u32 s28, s28, {WS_WQKV}
    s_lshl_b32 s29, s26, 10
    s_add_u32 s28, s28, s29
    s_lshl_b32 s36, s25, 3
    s_add_u32 s36, s36, s26
    s_mul_i32 s37, s36, 36864
    s_add_u32 s37, s37, {WS_H1}""")
    BR = 16

    def bload(s):
        sl = s % 8
        k(f"s_add_u32 s35, s37, {1024*s}")
        k(f"buffer_load_dwordx4 v[{BR+4*sl}:{BR+4*sl+3}], v13, s[20:23], s35 offen")
        q.append(("b", s))

    def dma(i):
        g = [f"s_add_u32 m0, s29, {8192*i}", f"s_add_u32 s34, s28, {8192*i}",
             f"buffer_load_dwordx4 v13, s[20:23], s34 offen lds"]
        if i == 13:
            lab = k.newlabel("nod")
            k("s_cmp_ge_u32 s26, 4")
            k(f"s_cbranch_scc1 {lab}")
            for l in g:
                k(l)
            k.label(lab)
            q.append(("opt", ("d", 2)))
        else:
            for l in g:
                k(l)
            q.append(("d", min(2, (8 * i) // 36)))
    for i in range(5):
        dma(i)
    for s in range(6):
        bload(s)
    for i in range(5, 14):
        dma(i)
    k("""v_and_b32 v4, 31, v2
    v_lshrrev_b32 v5, 5, v2
    s_mul_i32 s27, s24, 648
    v_lshlrev_b32 v6, 1, v4
    v_mul_u32_u24 v7, 144, v5
    v_add_u32 v6, v6, v7
    v_add_u32 v6, s27, v6
    v_cmp_gt_u32 vcc, 18, v4
    v_mov_b32 v7, 0x7fffffff
    v_cndmask_b32 v6, v7, v6, vcc""")
    WP = 176
    for j in range(8):
        d = 8 * (j >> 2) + (j & 3)
        k(f"buffer_load_ushort v{WP+j}, v6, s[16:19], 0 offen offset:{36*d}")
        q.append(("w", 0))
    k(f"""v_cndmask_b32 v8, v6, v7, s[30:31]
    buffer_load_ushort v{WP+8}, v8, s[16:19], 0 offen offset:576
    buffer_load_ushort v{WP+9}, v8, s[16:19], 0 offen offset:612""")
    q.append(("w", 0))
    q.append(("w", 0))
    k("""v_lshlrev_b32 v9, 2, v5
    v_sub_u32 v9, v4, v9
    v_mov_b32 v10, 0x3f80
    v_mov_b32 v11, 0x3f800000""")
    consts = [0, 1, 2, 3, 8, 9, 10, 11]
    for qq in range(4):
        k(f"v_cmp_eq_u32 vcc, {consts[2*qq]}, v9")
        k(f"v_cndmask_b32 v{80+qq}, 0, v10, vcc")
        k(f"v_cmp_eq_u32 vcc, {consts[2*qq+1]}, v9")
        k(f"v_cndmask_b32 v12, 0, v11, vcc")
        k(f"v_or_b32 v{80+qq}, v{80+qq}, v12")
    k("""v_cmp_eq_u32 vcc, 16, v2
    v_cndmask_b32 v84, 0, v10, vcc
    v_cmp_eq_u32 vcc, 17, v2
    v_cndmask_b32 v12, 0, v11, vcc
    v_or_b32 v84, v84, v12
    v_mov_b32 v85, 0
    v_mov_b32 v86, 0
    v_mov_b32 v87, 0
    v_mov_b32 v88, 0
    v_mov_b32 v89, v84
    v_mov_b32 v90, 0
    v_mov_b32 v91, 0
    v_cmp_eq_u32 s[32:33], 18, v4""")
    k("""v_and_b32 v3, 15, v2
    v_lshrrev_b32 v6, 2, v3
    v_and_b32 v3, 3, v3
    v_lshlrev_b32 v7, 3, v5
    v_add_u32 v6, v6, v7
    v_mul_u32_u24 v6, 192, v6
    v_lshlrev_b32 v3, 3, v3
    v_add_u32 v6, v6, v3
    v_lshrrev_b32 v7, 4, v2
    v_and_b32 v7, 1, v7
    v_lshlrev_b32 v7, 5, v7
    v_add_u32 v14, v6, v7
    v_add_u32 v15, 61440, v14""")
    AF = 48

    def aread(s):
        buf = s % 2
        base, off0 = (14, 3072 * s) if s < 20 else (15, 3072 * s - 61440)
        for w in range(3):
            for rd in range(2):
                r = AF + 12 * buf + 4 * w + 2 * rd
                k(f"ds_read_b64_tr_b16 v[{r}:{r+1}], v{base} offset:{off0 + 768*rd + 64*w}")
    QT, KT, VV = 128, 144, 160
    for s in range(36):
        if s % 12 == 0:
            k(f"s_waitcnt vmcnt({wait_n(('d', s // 12))}) lgkmcnt(0)")
            k("s_barrier")
            stamp()
            aread(s)
        nxt = (s + 1 < 36) and ((s + 1) % 12 != 0)
        if nxt:
            aread(s + 1)
        k(f"s_waitcnt vmcnt({wait_n(('b', s))}) lgkmcnt({6 if nxt else 0})")
        b = BR + 4 * (s % 8)
        buf = s % 2
        aq, ak, av = AF + 12 * buf, AF + 12 * buf + 4, AF + 12 * buf + 8
        z = s == 0
        k(f"v_mfma_f32_32x32x16_bf16 v[{QT}:{QT+15}], v[{aq}:{aq+3}], v[{b}:{b+3}], " + ("0" if z else f"v[{QT}:{QT+15}]"))
        k(f"v_mfma_f32_32x32x16_bf16 v[{KT}:{KT+15}], v[{ak}:{ak+3}], v[{b}:{b+3}], " + ("0" if z else f"v[{KT}:{KT+15}]"))
        k(f"v_mfma_f32_32x32x16_bf16 v[{VV}:{VV+15}], v[{b}:{b+3}], v[{av}:{av+3}], " + ("0" if z else f"v[{VV}:{VV+15}]"))
        if s + 6 < 36:
            bload(s + 6)
    stamp()
    for qq in range(4):
        k(f"v_lshl_or_b32 v{72+qq}, v{WP+1+2*qq}, 16, v{WP+2*qq}")
    k(f"""v_lshl_or_b32 v76, v{WP+9}, 16, v{WP+8}
    v_mov_b32 v77, 0
    v_mov_b32 v78, 0
    v_mov_b32 v79, 0""")
    KVP, KVN = 96, 112
    P = 16
    T = 32
    FA, FB = 60, 64
    F0, F1, FXr = 68, 92, 60
    k(f"""s_lshl_b32 s36, s36, 5
    s_add_u32 s36, s36, s24
    s_mul_i32 s36, s36, 2304
    s_add_u32 s36, s36, {WS_PHIQ}""")
    pack16(k, KT, FB, T)
    k(f"v_mfma_f32_32x32x16_bf16 v[{P}:{P+15}], v[72:75], v[{FB}:{FB+3}], 0")
    k(f"v_mfma_f32_32x32x16_bf16 v[{P}:{P+15}], v[76:79], v[{T}:{T+3}], v[{P}:{P+15}]")
    PQ = 176
    pack16(k, QT, FA, 192)
    k(f"v_mfma_f32_32x32x16_bf16 v[{PQ}:{PQ+15}], v[72:75], v[{FA}:{FA+3}], 0")
    k(f"v_mfma_f32_32x32x16_bf16 v[{PQ}:{PQ+15}], v[76:79], v[192:195], v[{PQ}:{PQ+15}]")
    softmax_pm(k, P, F0, F1, FXr, T)
    TP, TN = P, T
    k(f"v_mfma_f32_32x32x16_bf16 v[{TP}:{TP+15}], v[{F0}:{F0+3}], v[80:83], 0")
    k(f"v_mfma_f32_32x32x16_bf16 v[{TN}:{TN+15}], v[{F1}:{F1+3}], v[80:83], 0")
    k(f"v_mfma_f32_32x32x16_bf16 v[{TP}:{TP+15}], v[{FXr}:{FXr+3}], v[84:87], v[{TP}:{TP+15}]")
    k(f"v_mfma_f32_32x32x16_bf16 v[{TN}:{TN+15}], v[{FXr}:{FXr+3}], v[88:91], v[{TN}:{TN+15}]")
    V0, V1 = 48, 52
    pack16(k, VV, V0, V1)
    k("v_mov_b32 v56, 0x3f803f80")
    for qq in range(8):
        k(f"v_cndmask_b32 v{V0+qq}, v{V0+qq}, v56, s[32:33]")
    softmax_pm(k, PQ, 160, 164, 168, 128)
    k(f"buffer_store_dwordx4 v[160:163], v13, s[20:23], s36 offen")
    k(f"buffer_store_dwordx4 v[164:167], v13, s[20:23], s36 offen offset:1024")
    k("v_lshlrev_b32 v172, 3, v2")
    k("s_mov_b32 exec_hi, 0")
    k(f"buffer_store_dwordx2 v[168:169], v172, s[20:23], s36 offen offset:2048")
    k("s_mov_b32 exec_hi, -1")
    pack16(k, TP, 60, 64)
    pack16(k, TN, 68, 92)
    k(f"v_mfma_f32_32x32x16_bf16 v[{KVP}:{KVP+15}], v[60:63], v[{V0}:{V0+3}], 0")
    k(f"v_mfma_f32_32x32x16_bf16 v[{KVN}:{KVN+15}], v[68:71], v[{V0}:{V0+3}], 0")
    k(f"v_mfma_f32_32x32x16_bf16 v[{KVP}:{KVP+15}], v[64:67], v[{V1}:{V1+3}], v[{KVP}:{KVP+15}]")
    k(f"v_mfma_f32_32x32x16_bf16 v[{KVN}:{KVN+15}], v[92:95], v[{V1}:{V1+3}], v[{KVN}:{KVN+15}]")
    stamp()
    k(f"""v_mul_u32_u24 v3, 192, v4
    v_lshlrev_b32 v6, 5, v5
    v_add_u32 v3, v3, v6
    s_mul_i32 s27, s26, 3840
    s_add_u32 s27, s27, {LDS_KV}
    v_add_u32 v3, s27, v3
    s_mov_b32 exec_lo, 0x7ffff
    s_mov_b32 exec_hi, 0x7ffff
    ds_write_b128 v3, v[{KVP}:{KVP+3}]
    ds_write_b128 v3, v[{KVP+4}:{KVP+7}] offset:16
    ds_write_b128 v3, v[{KVN}:{KVN+3}] offset:64
    ds_write_b128 v3, v[{KVN+4}:{KVN+7}] offset:80
    s_mov_b32 exec_hi, 0
    ds_write_b64 v3, v[{KVP+8}:{KVP+9}] offset:128
    ds_write_b64 v3, v[{KVN+8}:{KVN+9}] offset:136
    s_mov_b64 exec, -1
    s_waitcnt lgkmcnt(0)
    s_barrier
    v_lshlrev_b32 v3, 2, v0
    v_add_u32 v6, {LDS_KV}, v3
    s_mul_i32 s36, s24, {KV_HEAD}
    s_add_u32 s36, s36, {WS_KV}""")
    for part, lim in ((0, 512), (1, 400)):
        k(f"v_add_u32 v7, {512*part}, v0")
        k("v_mul_u32_u24 v8, 1366, v7")
        k("v_lshrrev_b32 v8, 16, v8")
        k("v_mul_u32_u24 v8, 48, v8")
        k("v_sub_u32 v8, v7, v8")
        k("v_cmp_gt_u32 vcc, 36, v8")
        k("s_mov_b64 s[40:41], vcc")
        k(f"v_cmp_gt_u32 vcc, {lim}, v0")
        k("s_and_b64 vcc, vcc, s[40:41]")
        k("s_and_saveexec_b64 s[38:39], vcc")
        sk = k.newlabel("skip")
        k(f"s_cbranch_execz {sk}")
        for w in range(8):
            k(f"ds_read_b32 v{16+w}, v6 offset:{3840*w + 2048*part}")
        k("s_waitcnt lgkmcnt(0)")
        for w in range(1, 8):
            k(f"v_add_f32 v16, v16, v{16+w}")
        k(f"buffer_atomic_add_f32 v16, v3, s[20:23], s36 offen offset:{2048*part}")
        k.label(sk)
        k("s_mov_b64 exec, s[38:39]")
    stamp()
    if stamp.on:
        k("s_waitcnt vmcnt(0)")
    stamp()
    k.label(end)
    k("s_endpgm")
    return k, (256, 1, 1), 512, LDS_KV + 8 * 3840
```

```python
from asmlib import Kern
from gencommon import *


def gen_k2():
    k = Kern("k2_attn_kernel", vgpr=200, sgpr=64)
    end = k.newlabel("end")
    LDS_KV = 73728
    k(f"""s_load_dwordx2 s[6:7], s[0:1], {KA_X}
    s_load_dwordx2 s[8:9], s[0:1], {KA_WS}
    s_waitcnt lgkmcnt(0)""")
    srd(k, 16, 6, S * D * 2)
    srd(k, 20, 8, WS_SIZE)
    k(f"""s_cmp_ge_u32 s2, 144
    s_cbranch_scc1 {end}
    s_mul_i32 s25, s2, 7282
    s_lshr_b32 s25, s25, 16
    s_mul_i32 s24, s25, 9
    s_sub_u32 s24, s2, s24
    v_lshrrev_b32 v1, 6, v0
    v_and_b32 v2, 63, v0
    v_readfirstlane_b32 s26, v1
    v_and_b32 v4, 31, v2
    v_lshrrev_b32 v5, 5, v2
    v_lshlrev_b32 v13, 4, v2
    s_and_b32 s31, s26, 3
    s_lshr_b32 s32, s26, 2""")
    stamp = Stamps(k, 26, 200)
    k(f"""v_lshlrev_b32 v7, 4, v0
    v_lshlrev_b32 v8, 3, v0
    v_add_u32 v8, {LDS_KV}, v8""")
    for i in range(15):
        k(f"s_mov_b32 s34, {WS_KV + 8192*i}")
        k(f"buffer_load_dwordx4 v[{16+4*i}:{19+4*i}], v7, s[20:23], s34 offen")
    k(f"""s_mul_i32 s28, s24, 73728
    s_add_u32 s28, s28, {WS_WO}
    s_lshl_b32 s29, s26, 10
    s_add_u32 s28, s28, s29""")
    for i in range(9):
        k(f"s_add_u32 m0, s29, {8192*i}")
        k(f"s_add_u32 s34, s28, {8192*i}")
        k("buffer_load_dwordx4 v13, s[20:23], s34 offen lds")
    k(f"""s_lshl_b32 s36, s25, 2
    s_add_u32 s36, s36, s31
    s_mul_i32 s37, s36, 73728
    s_mul_i32 s27, s32, 36864
    s_add_u32 s37, s37, s27
    s_add_u32 s37, s37, {WS_PHIQ}""")
    PH = 100
    KA = 76
    WA = 88
    D3 = 16
    OF = 32
    OX = 36
    TM = 40
    ACC = 44

    def phload(h):
        sl = h % 8
        k(f"s_add_u32 s38, s37, {2304*h}")
        for fr in range(2):
            r = PH + 12 * sl + 4 * fr
            k(f"buffer_load_dwordx4 v[{r}:{r+3}], v13, s[20:23], s38 offen offset:{1024*fr}")
        r = PH + 12 * sl + 8
        k(f"buffer_load_dwordx2 v[{r}:{r+1}], v15, s[20:23], s38 offen offset:2048")
    k("""v_lshlrev_b32 v15, 3, v2
    v_mov_b32 v3, 0x7fffff00
    v_cmp_gt_u32 vcc, 32, v2
    v_cndmask_b32 v15, v3, v15, vcc""")
    for sl in range(8):
        k(f"v_mov_b32 v{PH+12*sl+10}, 0")
        k(f"v_mov_b32 v{PH+12*sl+11}, 0")
    for h in range(7):
        phload(h)
    for i in range(15):
        k(f"s_waitcnt vmcnt({14-i + 9 + 21})")
        k(f"v_cvt_pk_bf16_f32 v{16+4*i}, v{16+4*i}, v{17+4*i}")
        k(f"v_cvt_pk_bf16_f32 v{17+4*i}, v{18+4*i}, v{19+4*i}")
        k(f"ds_write_b64 v8, v[{16+4*i}:{17+4*i}] offset:{4096*i}")
    k(f"""v_cmp_gt_u32 vcc, 19, v4
    v_mov_b32 v9, 19
    v_cndmask_b32 v9, v9, v4, vcc
    v_cmp_eq_u32 vcc, 22, v4
    v_cndmask_b32 v9, v9, 18, vcc
    v_mul_u32_u24 v9, 96, v9
    v_lshlrev_b32 v10, 4, v5
    v_add_u32 v9, v9, v10
    s_mul_i32 s27, s32, 30720
    s_add_u32 s27, s27, {LDS_KV}
    v_add_u32 v9, s27, v9""")
    k("""v_and_b32 v3, 15, v2
    v_lshrrev_b32 v6, 2, v3
    v_and_b32 v3, 3, v3
    v_lshlrev_b32 v3, 3, v3
    v_lshrrev_b32 v7, 4, v2
    v_and_b32 v7, 1, v7
    v_lshlrev_b32 v7, 5, v7
    v_add_u32 v3, v3, v7
    s_mul_i32 s27, s32, 18432
    v_add_u32 v3, s27, v3
    v_lshlrev_b32 v7, 2, v5
    v_add_u32 v7, v7, v6
    v_lshlrev_b32 v7, 6, v7
    v_add_u32 v10, v3, v7
    v_add_u32 v11, 36864, v10
    v_lshrrev_b32 v7, 1, v6
    v_mul_u32_u24 v7, 18, v7
    v_and_b32 v8, 1, v6
    v_add_u32 v7, v7, v8
    v_lshlrev_b32 v7, 6, v7
    v_add_u32 v12, v3, v7
    v_add_u32 v14, 36864, v12""")
    k("s_waitcnt vmcnt(21) lgkmcnt(0)")
    k("s_barrier")
    stamp()
    for h in range(16):
        if h + 7 < 16:
            phload(h + 7)
        for fr in range(3):
            k(f"ds_read_b128 v[{KA+4*fr}:{KA+4*fr+3}], v9 offset:{1920*h + 32*fr}")
        for t in range(2):
            for rd in range(2):
                r = WA + 4 * t + 2 * rd
                k(f"ds_read_b64_tr_b16 v[{r}:{r+1}], v{10+t} offset:{(18*h + 8*rd)*64}")
        infl = 3 * (min(15, h + 7) - h)
        k(f"s_waitcnt vmcnt({infl}) lgkmcnt(4)")
        sl = h % 8
        for fr in range(3):
            b = PH + 12 * sl + 4 * fr
            c = "0" if fr == 0 else f"v[{D3}:{D3+15}]"
            k(f"v_mfma_f32_32x32x16_bf16 v[{D3}:{D3+15}], v[{KA+4*fr}:{KA+4*fr+3}], v[{b}:{b+3}], {c}")
        for r in range(0, 10, 2):
            round2(k, D3 + r, D3 + r + 1, TM + (r // 2) % 2)
        round1(k, D3 + 10, TM + 2)
        k(f"v_add_f32 v{D3+10}, 0x358637bd, v{D3+10}")
        round1(k, D3 + 10, TM + 2)
        k(f"v_rcp_f32 v{D3+10}, v{D3+10}")
        for r in range(10):
            k(f"v_mul_f32 v{D3+r}, v{D3+r}, v{D3+10}")
        for q in range(4):
            k(f"v_cvt_pk_bf16_f32 v{OF+q}, v{D3+2*q}, v{D3+2*q+1}")
        k(f"v_cvt_pk_bf16_f32 v{OX + h%4}, v{D3+8}, v{D3+9}")
        k("s_waitcnt lgkmcnt(0)")
        for t in range(2):
            c = "0" if h == 0 else f"v[{ACC+16*t}:{ACC+16*t+15}]"
            k(f"v_mfma_f32_32x32x16_bf16 v[{ACC+16*t}:{ACC+16*t+15}], v[{WA+4*t}:{WA+4*t+3}], v[{OF}:{OF+3}], {c}")
        if h % 4 == 3:
            g = h // 4
            for t in range(2):
                for rd in range(2):
                    r = WA + 4 * t + 2 * rd
                    k(f"ds_read_b64_tr_b16 v[{r}:{r+1}], v{12+2*t} offset:{(18*(4*g+2*rd)+16)*64}")
            k("s_waitcnt lgkmcnt(0)")
            for t in range(2):
                k(f"v_mfma_f32_32x32x16_bf16 v[{ACC+16*t}:{ACC+16*t+15}], v[{WA+4*t}:{WA+4*t+3}], v[{OX}:{OX+3}], v[{ACC+16*t}:{ACC+16*t+15}]")
    stamp()
    k(f"""s_lshl_b32 s38, s36, 5
    v_add_u32 v3, s38, v4
    v_mul_u32_u24 v3, 1152, v3
    v_lshlrev_b32 v6, 3, v5
    v_add_u32 v3, v3, v6
    s_lshl_b32 s39, s24, 7
    s_lshl_b32 s27, s32, 6
    s_add_u32 s39, s39, s27
    v_add_u32 v3, s39, v3
    v_lshlrev_b32 v6, 4, v5
    s_lshl_b32 s39, s39, 1
    s_add_u32 s39, s39, {WS_MOD + 2*576*4}
    s_mov_b32 s40, {WS_X1}""")
    for q in range(4):
        k(f"buffer_load_dwordx4 v[{100+4*q}:{103+4*q}], v6, s[20:23], s39 offen offset:{32*q}")
        k(f"buffer_load_dwordx2 v[{116+2*q}:{117+2*q}], v3, s[16:19], 0 offen offset:{16*q}")
    k(f"""s_barrier
    s_lshl_b32 s27, s26, 12
    v_add_u32 v7, s27, v13
    s_xor_b32 s27, s26, 4
    s_lshl_b32 s27, s27, 12
    v_add_u32 v8, s27, v13""")
    l0 = k.newlabel("kh0")
    l1 = k.newlabel("join")
    k("s_cmp_eq_u32 s32, 0")
    k(f"s_cbranch_scc1 {l0}")
    for q in range(4):
        k(f"ds_write_b128 v7, v[{ACC+4*q}:{ACC+4*q+3}] offset:{1024*q}")
    for r in range(16):
        k(f"v_mov_b32 v{ACC+r}, v{ACC+16+r}")
    k(f"s_branch {l1}")
    k.label(l0)
    for q in range(4):
        k(f"ds_write_b128 v7, v[{ACC+16+4*q}:{ACC+16+4*q+3}] offset:{1024*q}")
    k.label(l1)
    k("s_waitcnt lgkmcnt(0)")
    k("s_barrier")
    for q in range(4):
        k(f"ds_read_b128 v[{16+4*q}:{19+4*q}], v8 offset:{1024*q}")
    k("s_waitcnt vmcnt(0) lgkmcnt(0)")
    for q in range(4):
        a = ACC + 4 * q
        g = 100 + 4 * q
        x = 116 + 2 * q
        for e in range(4):
            k(f"v_add_f32 v{a+e}, v{a+e}, v{16+4*q+e}")
        round2(k, a, a + 1, TM)
        round2(k, a + 2, a + 3, TM + 1)
        for e in range(4):
            k(f"v_mul_f32 v{a+e}, v{a+e}, v{g+e}")
        round2(k, a, a + 1, TM)
        round2(k, a + 2, a + 3, TM + 1)
        k(f"v_lshlrev_b32 v{TM}, 16, v{x}")
        k(f"v_and_b32 v{TM+1}, 0xffff0000, v{x}")
        k(f"v_lshlrev_b32 v{TM+2}, 16, v{x+1}")
        k(f"v_and_b32 v{TM+3}, 0xffff0000, v{x+1}")
        for e in range(4):
            k(f"v_add_f32 v{a+e}, v{a+e}, v{TM+e}")
        k(f"v_cvt_pk_bf16_f32 v{x}, v{a}, v{a+1}")
        k(f"v_cvt_pk_bf16_f32 v{x+1}, v{a+2}, v{a+3}")
        k(f"buffer_store_dwordx2 v[{x}:{x+1}], v3, s[20:23], s40 offen offset:{16*q}")
    stamp()
    k.label(end)
    k("s_endpgm")
    return k, (144, 1, 1), 512, LDS_KV + 61440
```

```python
from asmlib import Kern
from gencommon import *
from k3 import f2u, C0, C1


class VQ:
    def __init__(self):
        self.q = []

    def issue(self, tag):
        self.q.append(tag)

    def wait_for(self, tags):
        last = -1
        for i, t in enumerate(self.q):
            if t in tags:
                last = i
        n = len(self.q) - 1 - last
        self.q = self.q[last + 1:]
        return n


def gelu_epilogue_pk(A, T, PK, cs):
    L = []
    c0, c1, one = cs["c0"], cs["c1"], cs["one"]
    for r in range(0, 16, 2):
        L.append(f"v_cvt_pk_bf16_f32 v{T + r//2}, v{A+r}, v{A+r+1}")
    for r in range(0, 16, 2):
        L.append(f"v_lshlrev_b32 v{A+r}, 16, v{T + r//2}")
        L.append(f"v_and_b32 v{A+r+1}, 0xffff0000, v{T + r//2}")
    for r in range(0, 8, 2):
        L.append(f"v_pk_mul_f32 v[{T+r}:{T+r+1}], v[{A+r}:{A+r+1}], v[{A+r}:{A+r+1}]")
    for r in range(0, 8, 2):
        L.append(f"v_pk_fma_f32 v[{T+r}:{T+r+1}], v[{T+r}:{T+r+1}], v[{c1}:{c1+1}], v[{c0}:{c0+1}]")
    for r in range(0, 8, 2):
        L.append(f"v_pk_mul_f32 v[{T+r}:{T+r+1}], v[{T+r}:{T+r+1}], v[{A+r}:{A+r+1}]")
    for r in range(8):
        L.append(f"v_exp_f32 v{T+r}, v{T+r}")
    for r in range(0, 8, 2):
        L.append(f"v_pk_add_f32 v[{T+r}:{T+r+1}], v[{T+r}:{T+r+1}], v[{one}:{one+1}]")
    for r in range(8):
        L.append(f"v_rcp_f32 v{T+r}, v{T+r}")
    for r in range(0, 8, 2):
        L.append(f"v_pk_mul_f32 v[{A+r}:{A+r+1}], v[{A+r}:{A+r+1}], v[{T+r}:{T+r+1}]")
    for r in range(0, 8, 2):
        L.append(f"v_cvt_pk_bf16_f32 v{T + r//2}, v{A+r}, v{A+r+1}")
    for r in range(0, 8, 2):
        L.append(f"v_lshlrev_b32 v{A+r}, 16, v{T + r//2}")
        L.append(f"v_and_b32 v{A+r+1}, 0xffff0000, v{T + r//2}")
    for r in range(0, 8, 2):
        L.append(f"v_pk_mul_f32 v[{A+r}:{A+r+1}], v[{A+r}:{A+r+1}], v[{A+8+r}:{A+8+r+1}]")
    for q in range(4):
        L.append(f"v_cvt_pk_bf16_f32 v{PK+q}, v{A+2*q}, v{A+2*q+1}")
    return L


def gen_k3():
    k = Kern("k3_gateup_kernel", vgpr=240, sgpr=64)
    end = k.newlabel("end")
    SLAB = 37120
    UOFF = 18560
    k(f"""s_load_dwordx2 s[4:5], s[0:1], {KA_WG}
    s_load_dwordx2 s[6:7], s[0:1], {KA_WU}
    s_load_dwordx2 s[8:9], s[0:1], {KA_WS}
    s_waitcnt lgkmcnt(0)""")
    srd(k, 20, 8, WS_SIZE)
    k(f"""s_load_dwordx2 s[52:53], s[0:1], {KA_WD}
    s_waitcnt lgkmcnt(0)""")
    srd(k, 56, 52, 4608 * 1152)
    k(f"""s_cmp_ge_u32 s2, 256
    s_cbranch_scc1 {end}
    s_and_b32 s24, s2, 31
    s_lshr_b32 s25, s2, 5
    v_lshrrev_b32 v1, 6, v0
    v_and_b32 v2, 63, v0
    v_readfirstlane_b32 s26, v1
    v_lshrrev_b32 v5, 5, v2""")
    stamp = Stamps(k, 26, 240)
    k("""s_and_b32 s27, s26, 1
    s_cmp_eq_u32 s27, 0
    s_cselect_b32 s4, s4, s6
    s_cselect_b32 s5, s5, s7""")
    srd(k, 12, 4, 576 * 9216)
    k(f"""s_lshr_b32 s31, s26, 1
    s_and_b32 s31, s31, 1
    s_lshr_b32 s32, s26, 2
    s_mul_i32 s33, s32, 320
    s_mul_i32 s28, s24, 288
    s_mul_i32 s34, s31, {32*9216}
    s_add_u32 s28, s28, s34
    s_mul_i32 s29, s27, {UOFF}
    s_mul_i32 s34, s31, 9216
    s_add_u32 s29, s29, s34
    s_mul_i32 s34, s32, 5120
    s_add_u32 s29, s29, s34""")
    VO = 8
    for j in range(5):
        k(f"v_add_u32 v3, s33, v2")
        if j:
            k(f"v_add_u32 v3, {64*j}, v3")
        k("v_mul_u32_u24 v6, 3641, v3")
        k("v_lshrrev_b32 v6, 16, v6")
        k("v_mul_u32_u24 v7, 18, v6")
        k("v_sub_u32 v7, v3, v7")
        k("v_mul_u32_u24 v6, 9216, v6")
        k("v_lshlrev_b32 v7, 4, v7")
        k(f"v_add_u32 v{VO+j}, v6, v7")
    vq = VQ()

    def dma(sb):
        G = []
        for j in range(5):
            g = [f"s_add_u32 m0, s29, {(sb % 4)*SLAB + j*1024}",
                 f"s_add_u32 s30, s28, {sb*64*9216}",
                 f"buffer_load_dwordx4 v{VO+j}, s[12:15], s30 offen lds"]
            G.append(g)
        return G

    def emit_dma_group(g, j, tag):
        if j == 4:
            lab = k.newlabel("nod")
            k("s_cmp_lg_u32 s32, 0")
            k(f"s_cbranch_scc1 {lab}")
            for l in g:
                k(l)
            k.label(lab)
            vq.issue(("opt", tag))
        else:
            for l in g:
                k(l)
            vq.issue(tag)

    def wait_n(tags):
        last = -1
        for i, t in enumerate(vq.q):
            tt = t[1] if isinstance(t, tuple) and t[0] == "opt" else t
            if tt in tags:
                last = i
        n = sum(1 for t in vq.q[last + 1:] if not (isinstance(t, tuple) and t[0] == "opt"))
        vq.q = vq.q[last + 1:]
        return n

    k(f"""v_lshlrev_b32 v13, 4, v2
    s_lshl_b32 s36, s25, 3
    s_add_u32 s36, s36, s26
    s_mul_i32 s37, s36, 36864
    s_add_u32 s37, s37, {WS_H2}""")
    BR = 16
    AR = 48
    ACC = 64
    T = 208
    PK = 216
    CS = {"c0": 220, "c1": 222, "one": 224}

    def bload(s):
        sl = s % 8
        k(f"s_add_u32 s35, s37, {1024*s}")
        k(f"buffer_load_dwordx4 v[{BR+4*sl}:{BR+4*sl+3}], v13, s[20:23], s35 offen")
        vq.issue(("b", s))
    for j, g in enumerate(dma(0)):
        emit_dma_group(g, j, ("d", 0))
    for s in range(6):
        bload(s)
    for sb in (1, 2):
        for j, g in enumerate(dma(sb)):
            emit_dma_group(g, j, ("d", sb))
    k(f"""v_and_b32 v7, 15, v2
    v_lshrrev_b32 v6, 2, v7
    v_and_b32 v7, 3, v7
    v_lshlrev_b32 v7, 3, v7
    v_lshlrev_b32 v3, 3, v5
    v_add_u32 v6, v6, v3
    v_mul_u32_u24 v6, 288, v6
    v_add_u32 v6, v6, v7
    v_lshrrev_b32 v7, 4, v2
    v_and_b32 v7, 1, v7
    v_mul_u32_u24 v7, {UOFF}, v7
    v_add_u32 v226, v6, v7
    v_add_u32 v227, {SLAB}, v226
    v_add_u32 v228, {2*SLAB}, v226
    v_add_u32 v229, {3*SLAB}, v226
    s_mul_i32 s38, s36, {288*1024}
    s_mul_i32 s39, s24, {9*1024}
    s_add_u32 s38, s38, s39
    s_add_u32 s38, s38, {WS_H}
    v_mov_b32 v220, {f2u(C0)}
    v_mov_b32 v221, {f2u(C0)}
    v_mov_b32 v222, {f2u(C1)}
    v_mov_b32 v223, {f2u(C1)}
    v_mov_b32 v224, 1.0
    v_mov_b32 v225, 1.0""")

    def aread(g):
        s, t = divmod(g, 9)
        sb, ss = divmod(s, 4)
        base = 226 + sb % 4
        sl = g % 4
        for rd in range(2):
            r = AR + 4 * sl + 2 * rd
            k(f"ds_read_b64_tr_b16 v[{r}:{r+1}], v{base} offset:{(16*ss + 4*rd)*288 + 32*t}")
    k(f"s_waitcnt vmcnt({wait_n([('d', 0)])})")
    k("s_barrier")
    stamp()
    for sb in range(9):
        dm = list(enumerate(dma(sb + 3))) if sb + 3 < 9 else []
        g0 = sb * 36
        for j in range(3):
            aread(g0 + j)
        for gi in range(36):
            g = g0 + gi
            s, t = divmod(g, 9)
            issue = gi + 3 < 36
            if issue:
                aread(g + 3)
            w = f"lgkmcnt({6 if issue else 2*(35-gi)})"
            if t == 0:
                w = f"vmcnt({wait_n([('b', s)])}) " + w
            k(f"s_waitcnt {w}")
            sl = g % 4
            acc = ACC + 16 * t
            c = "0" if s == 0 else f"v[{acc}:{acc+15}]"
            b = BR + 4 * (s % 8)
            k(f"v_mfma_f32_32x32x16_bf16 v[{acc}:{acc+15}], v[{AR+4*sl}:{AR+4*sl+3}], v[{b}:{b+3}], {c}")
            if t == 8 and s + 6 < 36:
                bload(s + 6)
            if dm and gi % 4 == 1:
                j, grp = dm.pop(0)
                emit_dma_group(grp, j, ("d", sb + 3))
            if sb == 6 and gi in (3, 7, 11):
                k(f"s_lshl_b32 s54, s2, 3")
                k(f"s_add_u32 s54, s54, s26")
                k(f"s_mul_i32 s54, s54, 2592")
                k(f"s_add_u32 s54, s54, {(gi//4)*1024 if gi < 11 else 1568}")
                k(f"buffer_load_dwordx4 v[232:235], v13, s[56:59], s54 offen")
                vq.issue(("pf", gi))
        if sb < 8:
            k(f"s_waitcnt vmcnt({wait_n([('d', sb + 1)])})")
            k("s_barrier")
        stamp()
    for t in range(9):
        for l in gelu_epilogue_pk(ACC + 16 * t, T, PK, CS):
            k(l)
        k(f"s_add_u32 s41, s38, {1024*t}")
        k(f"buffer_store_dwordx4 v[{PK}:{PK+3}], v13, s[20:23], s41 offen")
    stamp()
    if stamp.on:
        k("s_waitcnt vmcnt(0)")
    stamp()
    k.label(end)
    k("s_endpgm")
    return k, (256, 1, 1), 512, 4 * SLAB
```

```python
from asmlib import Kern
from gencommon import *
from k3 import f2u, C0, C1
from k3b import gelu_epilogue_pk


def gen_k3():
    k = Kern("k3_gateup_kernel", vgpr=244, sgpr=64)
    end = k.newlabel("end")
    SLAB = 20736
    UOFF = 10368
    NR = 6
    k(f"""s_load_dwordx2 s[4:5], s[0:1], {KA_WG}
    s_load_dwordx2 s[6:7], s[0:1], {KA_WU}
    s_load_dwordx2 s[8:9], s[0:1], {KA_WS}
    s_load_dwordx2 s[52:53], s[0:1], {KA_WD}
    s_waitcnt lgkmcnt(0)""")
    srd(k, 20, 8, WS_SIZE)
    srd(k, 56, 52, 4608 * 1152)
    k(f"""s_cmp_ge_u32 s2, 256
    s_cbranch_scc1 {end}
    s_and_b32 s24, s2, 31
    s_lshr_b32 s25, s2, 5
    v_lshrrev_b32 v1, 6, v0
    v_and_b32 v2, 63, v0
    v_readfirstlane_b32 s26, v1
    v_lshrrev_b32 v5, 5, v2""")
    stamp = Stamps(k, 26, 244)
    k("""s_and_b32 s27, s26, 1
    s_cmp_eq_u32 s27, 0
    s_cselect_b32 s4, s4, s6
    s_cselect_b32 s5, s5, s7""")
    srd(k, 12, 4, 576 * 9216)
    k(f"""s_lshr_b32 s32, s26, 1
    s_lshl_b32 s33, s32, 6
    s_mul_i32 s28, s24, 288
    s_mul_i32 s29, s27, {UOFF}
    s_lshl_b32 s34, s32, 10
    s_add_u32 s29, s29, s34""")
    VO = 8
    for j in range(3):
        k(f"v_add_u32 v3, s33, v2")
        if j:
            k(f"v_add_u32 v3, {256*j}, v3")
        k("v_mul_u32_u24 v6, 6554, v3")
        k("v_lshrrev_b32 v6, 16, v6")
        k("v_mul_u32_u24 v7, 10, v6")
        k("v_sub_u32 v7, v3, v7")
        k("v_mul_u32_u24 v6, 9216, v6")
        k("v_lshlrev_b32 v7, 4, v7")
        k(f"v_add_u32 v{VO+j}, v6, v7")
    q = []

    def emit_dma(gsb, j):
        p, sb = divmod(gsb, 9)
        g = [f"s_add_u32 m0, s29, {(gsb % NR)*SLAB + j*4096}",
             f"s_add_u32 s30, s28, {sb*64*9216 + p*128}",
             f"buffer_load_dwordx4 v{VO+j}, s[12:15], s30 offen lds"]
        if j == 2:
            lab = k.newlabel("nod")
            k("s_cmp_ge_u32 s32, 2")
            k(f"s_cbranch_scc1 {lab}")
            for l in g:
                k(l)
            k.label(lab)
            q.append(("opt", ("d", gsb)))
        else:
            for l in g:
                k(l)
            q.append(("d", gsb))

    def wait_n(tag):
        last = -1
        for i, t in enumerate(q):
            tt = t[1] if t[0] == "opt" else t
            if tt == tag:
                last = i
        n = sum(1 for t in q[last + 1:] if t[0] != "opt")
        del q[:last + 1]
        return min(n, 63)

    k(f"""v_lshlrev_b32 v13, 4, v2
    s_lshl_b32 s36, s25, 3
    s_add_u32 s36, s36, s26
    s_mul_i32 s37, s36, 36864
    s_add_u32 s37, s37, {WS_H2}""")
    BR = 16
    AR = 48
    ACC = 64
    T = 208
    PK = 216
    CS = {"c0": 220, "c1": 222, "one": 224}
    TB = 226

    def bload(gs):
        s = gs % 36
        sl = gs % 8
        k(f"s_add_u32 s35, s37, {1024*s}")
        k(f"buffer_load_dwordx4 v[{BR+4*sl}:{BR+4*sl+3}], v13, s[20:23], s35 offen")
        q.append(("b", gs))
    for j in range(3):
        emit_dma(0, j)
    for s in range(2):
        bload(s)
    for j in range(3):
        emit_dma(1, j)
    for s in range(2, 6):
        bload(s)
    k(f"""v_and_b32 v7, 15, v2
    v_lshrrev_b32 v6, 2, v7
    v_and_b32 v7, 3, v7
    v_lshlrev_b32 v7, 3, v7
    v_lshlrev_b32 v3, 3, v5
    v_add_u32 v6, v6, v3
    v_mul_u32_u24 v6, 160, v6
    v_add_u32 v6, v6, v7
    v_lshrrev_b32 v7, 4, v2
    v_and_b32 v7, 1, v7
    v_mul_u32_u24 v7, {UOFF}, v7
    v_add_u32 v{TB}, v6, v7""")
    for i in range(1, NR):
        k(f"v_add_u32 v{TB+i}, {i*SLAB}, v{TB}")
    k(f"""s_mul_i32 s38, s36, {288*1024}
    s_mul_i32 s39, s24, {9*1024}
    s_add_u32 s38, s38, s39
    s_add_u32 s38, s38, {WS_H}
    v_mov_b32 v220, {f2u(C0)}
    v_mov_b32 v221, {f2u(C0)}
    v_mov_b32 v222, {f2u(C1)}
    v_mov_b32 v223, {f2u(C1)}
    v_mov_b32 v224, 1.0
    v_mov_b32 v225, 1.0""")
    tiles_of = [list(range(0, 5)), list(range(5, 9))]
    cnt = [0]

    k(f"s_waitcnt vmcnt({wait_n(('d', 0))})")
    k("s_barrier")
    stamp()
    side = []
    for p in range(2):
        tl = tiles_of[p]
        nt = len(tl)
        if p == 1:
            for t in tiles_of[0]:
                side += gelu_epilogue_pk(ACC + 16 * t, T, PK, CS)
                side.append(f"s_add_u32 s41, s38, {1024*t}")
                side.append(f"buffer_store_dwordx4 v[{PK}:{PK+3}], v13, s[20:23], s41 offen")
        total_m = 36 * nt
        done_m = 0
        for sb in range(9):
            gsb = p * 9 + sb
            xs = {0: [2, 3], 1: [4, 5]}.get(gsb, [gsb + 4])
            dm = [(x, j) for x in xs if x < 18 for j in range(3)]
            seq = [(ss, t) for ss in range(4) for t in tl]

            def aread(item, slot):
                ss, t = item
                base = TB + gsb % NR
                for rd in range(2):
                    r = AR + 4 * slot + 2 * rd
                    k(f"ds_read_b64_tr_b16 v[{r}:{r+1}], v{base} offset:{(16*ss + 4*rd)*160 + 32*(t - 4*p)}")
            c0 = cnt[0]
            for j in range(3):
                aread(seq[j], (c0 + j) % 4)
            for gi, (ss, t) in enumerate(seq):
                s = 4 * sb + ss
                gs = p * 36 + s
                issue = gi + 3 < len(seq)
                if issue:
                    aread(seq[gi + 3], (c0 + gi + 3) % 4)
                w = f"lgkmcnt({6 if issue else 2*(len(seq)-1-gi)})"
                if t == tl[0]:
                    w = f"vmcnt({wait_n(('b', gs))}) " + w
                k(f"s_waitcnt {w}")
                sl = (c0 + gi) % 4
                acc = ACC + 16 * t
                c = "0" if s == 0 else f"v[{acc}:{acc+15}]"
                b = BR + 4 * (gs % 8)
                k(f"v_mfma_f32_32x32x16_bf16 v[{acc}:{acc+15}], v[{AR+4*sl}:{AR+4*sl+3}], v[{b}:{b+3}], {c}")
                done_m += 1
                if t == tl[-1] and gs + 6 < 72:
                    bload(gs + 6)
                if dm and gi % 2 == 1:
                    emit_dma(*dm.pop(0))
                if side and done_m >= 3:
                    left = total_m - 4 - done_m
                    n = -(-len(side) // max(1, left))
                    for _ in range(min(n, len(side))):
                        l = side.pop(0)
                        k(l)
                        if l.startswith("buffer_store"):
                            q.append(("st", 0))
            cnt[0] = c0 + len(seq)
            assert not dm
            if gsb < 17:
                k(f"s_waitcnt vmcnt({wait_n(('d', gsb + 1))})")
                k("s_barrier")
            stamp()
    assert not side
    k(f"""s_lshl_b32 s54, s2, 3
    s_add_u32 s54, s54, s26
    s_mul_i32 s54, s54, 2592
    buffer_load_dwordx4 v[232:235], v13, s[56:59], s54 offen
    buffer_load_dwordx4 v[236:239], v13, s[56:59], s54 offen offset:1024
    buffer_load_dwordx4 v[240:243], v13, s[56:59], s54 offen offset:1568""")
    for t in tiles_of[1]:
        for l in gelu_epilogue_pk(ACC + 16 * t, T, PK, CS):
            k(l)
        k(f"s_add_u32 s41, s38, {1024*t}")
        k(f"buffer_store_dwordx4 v[{PK}:{PK+3}], v13, s[20:23], s41 offen")
    stamp()
    if stamp.on:
        k("s_waitcnt vmcnt(0)")
    stamp()
    k.label(end)
    k("s_endpgm")
    return k, (256, 1, 1), 512, NR * SLAB
```

```python
from asmlib import Kern
from gencommon import *

PART_KS = 64 * 2 * 36 * 1024


def gen_k4():
    k = Kern("k4_down_kernel", vgpr=168, sgpr=64)
    end = k.newlabel("end")
    SLAB = 36864
    k(f"""s_load_dwordx2 s[4:5], s[0:1], {KA_WD}
    s_load_dwordx2 s[8:9], s[0:1], {KA_WS}
    s_waitcnt lgkmcnt(0)""")
    srd(k, 12, 4, 4608 * 1152)
    srd(k, 20, 8, WS_SIZE)
    k(f"""s_cmp_ge_u32 s2, 256
    s_cbranch_scc1 {end}
    s_and_b32 s24, s2, 3
    s_lshr_b32 s25, s2, 3
    s_and_b32 s25, s25, 3
    s_lshr_b32 s33, s2, 2
    s_and_b32 s33, s33, 1
    s_lshl_b32 s33, s33, 3
    s_lshr_b32 s27, s2, 5
    s_add_u32 s33, s33, s27
    v_lshrrev_b32 v1, 6, v0
    v_and_b32 v2, 63, v0
    v_readfirstlane_b32 s26, v1
    v_lshrrev_b32 v5, 4, v2
    s_and_b32 s31, s26, 3
    s_lshr_b32 s32, s26, 2
    s_mul_i32 s34, s32, 320""")
    stamp = Stamps(k, 26, 170)
    VO = 8
    for j in range(5):
        k(f"v_add_u32 v3, s34, v2")
        if j:
            k(f"v_add_u32 v3, {64*j}, v3")
        k("v_mul_u32_u24 v6, 3641, v3")
        k("v_lshrrev_b32 v6, 16, v6")
        k("v_mul_u32_u24 v7, 18, v6")
        k("v_sub_u32 v7, v3, v7")
        k("v_mul_u32_u24 v6, 1152, v6")
        k("v_lshlrev_b32 v7, 4, v7")
        k(f"v_add_u32 v{VO+j}, v6, v7")
    k(f"""s_mul_i32 s28, s24, {1152*1152}
    s_mul_i32 s27, s25, 288
    s_add_u32 s28, s28, s27
    s_and_b32 s27, s31, 1
    s_mul_i32 s27, s27, {32*1152}
    s_add_u32 s28, s28, s27
    s_lshr_b32 s27, s31, 1
    s_mul_i32 s27, s27, {576*1152}
    s_add_u32 s28, s28, s27
    s_mul_i32 s29, s31, 9216
    s_mul_i32 s27, s32, 5120
    s_add_u32 s29, s29, s27""")
    q = []

    def emit_dma(sb, j):
        g = [f"s_add_u32 m0, s29, {(sb % 4)*SLAB + j*1024}",
             f"s_add_u32 s30, s28, {sb*64*1152}",
             f"buffer_load_dwordx4 v{VO+j}, s[12:15], s30 offen lds"]
        if j == 4:
            lab = k.newlabel("nod")
            k("s_cmp_lg_u32 s32, 0")
            k(f"s_cbranch_scc1 {lab}")
            for l in g:
                k(l)
            k.label(lab)
            q.append(("opt", ("d", sb)))
        else:
            for l in g:
                k(l)
            q.append(("d", sb))

    def wait_n(tag):
        last = -1
        for i, t in enumerate(q):
            tt = t[1] if t[0] == "opt" else t
            if tt == tag:
                last = i
        n = sum(1 for t in q[last + 1:] if t[0] != "opt")
        del q[:last + 1]
        return n
    k(f"""v_lshrrev_b32 v3, 1, v5
    v_lshlrev_b32 v3, 10, v3
    v_and_b32 v6, 1, v5
    v_lshlrev_b32 v6, 9, v6
    v_add_u32 v3, v3, v6
    v_and_b32 v6, 15, v2
    v_lshlrev_b32 v6, 4, v6
    v_add_u32 v14, v3, v6
    v_lshlrev_b32 v13, 4, v2
    s_lshl_b32 s36, s33, 2
    s_add_u32 s36, s36, s31
    s_mul_i32 s37, s36, {288*1024}
    s_mul_i32 s27, s24, {72*1024}
    s_add_u32 s37, s37, s27
    s_mul_i32 s27, s32, {36*1024}
    s_add_u32 s37, s37, s27
    s_add_u32 s37, s37, {WS_H}""")
    BR = 16
    AR = 64
    ACC = 80

    def bload(s):
        sl = s % 6
        k(f"s_add_u32 s35, s37, {2048*s}")
        k(f"buffer_load_dwordx4 v[{BR+8*sl}:{BR+8*sl+3}], v14, s[20:23], s35 offen")
        k(f"buffer_load_dwordx4 v[{BR+8*sl+4}:{BR+8*sl+7}], v14, s[20:23], s35 offen offset:256")
        q.append(("b", s))
        q.append(("b", s))
    for j in range(5):
        emit_dma(0, j)
    for s in range(2):
        bload(s)
    for j in range(5):
        emit_dma(1, j)
    for s in range(2, 4):
        bload(s)
    k(f"""v_and_b32 v7, 15, v2
    v_lshrrev_b32 v6, 2, v7
    v_and_b32 v7, 3, v7
    v_lshlrev_b32 v7, 3, v7
    v_lshrrev_b32 v3, 1, v5
    v_lshlrev_b32 v3, 4, v3
    v_add_u32 v6, v6, v3
    v_and_b32 v3, 1, v5
    v_lshlrev_b32 v3, 2, v3
    v_add_u32 v6, v6, v3
    v_mul_u32_u24 v6, 288, v6
    v_add_u32 v6, v6, v7
    s_mul_i32 s27, s32, 18432
    v_add_u32 v152, s27, v6
    v_add_u32 v153, {SLAB}, v152
    v_add_u32 v154, {2*SLAB}, v152
    v_add_u32 v155, {3*SLAB}, v152""")

    def aread(g):
        s, t = divmod(g, 9)
        sb, ss = divmod(s, 2)
        base = 152 + sb % 4
        sl = g % 4
        for rd in range(2):
            r = AR + 4 * sl + 2 * rd
            k(f"ds_read_b64_tr_b16 v[{r}:{r+1}], v{base} offset:{(32*ss + 8*rd)*288 + 32*t}")
    k(f"s_waitcnt vmcnt({wait_n(('d', 0))})")
    k("s_barrier")
    stamp()
    for sb in range(9):
        xs = {0: [2, 3]}.get(sb, [sb + 3])
        dm = [(x, j) for x in xs if x < 9 for j in range(5)]
        g0 = sb * 18
        for j in range(3):
            aread(g0 + j)
        for gi in range(18):
            g = g0 + gi
            s, t = divmod(g, 9)
            issue = gi + 3 < 18
            if issue:
                aread(g + 3)
            w = f"lgkmcnt({6 if issue else 2*(17-gi)})"
            if t == 0:
                w = f"vmcnt({wait_n(('b', s))}) " + w
            k(f"s_waitcnt {w}")
            sl = g % 4
            for u in range(2):
                acc = ACC + 8 * t + 4 * u
                c = "0" if s == 0 else f"v[{acc}:{acc+3}]"
                b = BR + 8 * (s % 6) + 4 * u
                k(f"v_mfma_f32_16x16x32_bf16 v[{acc}:{acc+3}], v[{AR+4*sl}:{AR+4*sl+3}], v[{b}:{b+3}], {c}")
            if t == 8 and s + 4 < 18:
                bload(s + 4)
            if dm and (gi % 3 == 1 or (sb == 0 and gi % 3 == 2)):
                emit_dma(*dm.pop(0))
        assert not dm
        if sb < 8:
            k(f"s_waitcnt vmcnt({wait_n(('d', sb + 1))})")
        k("s_barrier")
        stamp()
    give0 = k.newlabel("give0")
    join1 = k.newlabel("join1")
    k(f"""s_nop 7
    s_mul_i32 s27, s26, 10240
    v_add_u32 v3, s27, v13
    s_xor_b32 s27, s26, 4
    s_mul_i32 s27, s27, 10240
    v_add_u32 v6, s27, v13
    s_cmp_eq_u32 s32, 0
    s_cbranch_scc1 {give0}""")
    for i in range(10):
        a = ACC + 4 * i
        k(f"ds_write_b128 v3, v[{a}:{a+3}] offset:{1024*i}")
    k(f"s_branch {join1}")
    k.label(give0)
    for i in range(10, 18):
        a = ACC + 4 * i
        k(f"ds_write_b128 v3, v[{a}:{a+3}] offset:{1024*(i-10)}")
    k.label(join1)
    k(f"""s_waitcnt lgkmcnt(0)
    s_barrier""")
    stamp()
    k(f"""s_mul_i32 s38, s24, {PART_KS}
    s_mul_i32 s27, s36, {72*1024}
    s_add_u32 s38, s38, s27
    s_mul_i32 s27, s25, {9*1024}
    s_add_u32 s38, s38, s27
    s_add_u32 s38, s38, {WS_PART}""")
    keep0 = k.newlabel("keep0")
    fin = k.newlabel("fin")
    k("s_cmp_eq_u32 s32, 0")
    k(f"s_cbranch_scc1 {keep0}")

    def addstore(idx, first):
        for i in idx:
            r = 16 + 4 * (i - first)
            k(f"ds_read_b128 v[{r}:{r+3}], v6 offset:{1024*(i-first)}")
        n = len(idx)
        for c, i in enumerate(idx):
            t, u = divmod(i, 2)
            r = 16 + 4 * (i - first)
            a = ACC + 4 * i
            k(f"s_waitcnt lgkmcnt({n-1-c})")
            for e in range(0, 4, 2):
                k(f"v_pk_add_f32 v[{a+e}:{a+e+1}], v[{a+e}:{a+e+1}], v[{r+e}:{r+e+1}]")
            k(f"s_add_u32 s39, s38, {(36*u + t)*1024}")
            k(f"buffer_store_dwordx4 v[{a}:{a+3}], v13, s[20:23], s39 offen")
    addstore(list(range(10, 18)), 10)
    k(f"s_branch {fin}")
    k.label(keep0)
    addstore(list(range(0, 10)), 0)
    k.label(fin)
    stamp()
    if stamp.on:
        k("s_waitcnt vmcnt(0)")
    stamp()
    k.label(end)
    k("s_endpgm")
    return k, (256, 1, 1), 512, 4 * SLAB


def gen_k5():
    k = Kern("k5_reduce_kernel", vgpr=160, sgpr=48)
    end = k.newlabel("end")
    k(f"""s_load_dwordx2 s[4:5], s[0:1], {KA_OUT}
    s_load_dwordx2 s[8:9], s[0:1], {KA_WS}
    s_waitcnt lgkmcnt(0)""")
    srd(k, 12, 4, S * D * 2)
    srd(k, 20, 8, WS_SIZE)
    k(f"""s_cmp_ge_u32 s2, 192
    s_cbranch_scc1 {end}
    v_lshrrev_b32 v1, 6, v0
    v_and_b32 v2, 63, v0
    v_readfirstlane_b32 s26, v1
    v_and_b32 v4, 15, v2
    v_lshrrev_b32 v5, 4, v2
    s_lshl_b32 s24, s2, 2
    s_add_u32 s24, s24, s26
    s_mul_i32 s25, s24, 10923
    s_lshr_b32 s25, s25, 16
    s_mul_i32 s27, s25, 6
    s_sub_u32 s27, s24, s27
    v_lshlrev_b32 v13, 4, v2
    s_mul_i32 s28, s24, 6144
    s_add_u32 s28, s28, {WS_PART}""")
    for ks in range(4):
        for t in range(6):
            r = 16 + 24 * ks + 4 * t
            k(f"buffer_load_dwordx4 v[{r}:{r+3}], v13, s[20:23], s28 offen offset:{1024*t if t < 4 else 0}" if t < 4 else
              f"buffer_load_dwordx4 v[{r}:{r+3}], v13, s[20:23], s29 offen offset:{1024*(t-4)}")
            if t == 3:
                k("s_add_u32 s29, s28, 4096")
        if ks < 3:
            k(f"s_add_u32 s28, s28, {PART_KS}")
    k(f"""s_lshl_b32 s38, s25, 4
    v_add_u32 v3, s38, v4
    v_mul_u32_u24 v3, 1152, v3
    v_lshlrev_b32 v6, 3, v5
    v_add_u32 v3, v3, v6
    s_mul_i32 s39, s27, 192
    v_add_u32 v3, s39, v3
    v_lshlrev_b32 v6, 4, v5
    s_mul_i32 s39, s27, 384
    s_add_u32 s39, s39, {WS_MOD + 5*576*4}
    s_mov_b32 s40, {WS_X1}""")
    for t in range(6):
        k(f"buffer_load_dwordx4 v[{112+4*t}:{115+4*t}], v6, s[20:23], s39 offen offset:{64*t}")
        k(f"buffer_load_dwordx2 v[{136+2*t}:{137+2*t}], v3, s[20:23], s40 offen offset:{32*t}")
    k("s_waitcnt vmcnt(12)")
    for ks in range(1, 4):
        for r in range(0, 24, 2):
            k(f"v_pk_add_f32 v[{16+r}:{17+r}], v[{16+r}:{17+r}], v[{16+24*ks+r}:{17+24*ks+r}]")
    k("s_waitcnt vmcnt(0)")
    TM = 148
    for t in range(6):
        a = 16 + 4 * t
        g = 112 + 4 * t
        x = 136 + 2 * t
        round2(k, a, a + 1, TM)
        round2(k, a + 2, a + 3, TM)
        for e in range(4):
            k(f"v_mul_f32 v{a+e}, v{a+e}, v{g+e}")
        round2(k, a, a + 1, TM)
        round2(k, a + 2, a + 3, TM)
        k(f"v_lshlrev_b32 v{TM}, 16, v{x}")
        k(f"v_and_b32 v{TM+1}, 0xffff0000, v{x}")
        k(f"v_lshlrev_b32 v{TM+2}, 16, v{x+1}")
        k(f"v_and_b32 v{TM+3}, 0xffff0000, v{x+1}")
        for e in range(4):
            k(f"v_add_f32 v{a+e}, v{a+e}, v{TM+e}")
        k(f"v_cvt_pk_bf16_f32 v{x}, v{a}, v{a+1}")
        k(f"v_cvt_pk_bf16_f32 v{x+1}, v{a+2}, v{a+3}")
        k(f"buffer_store_dwordx2 v[{x}:{x+1}], v3, s[12:15], 0 offen offset:{32*t}")
    k.label(end)
    k("s_endpgm")
    return k, (192, 1, 1), 256, 0
```

```python
import sys
from asmlib import Kern

from gencommon import *
from k1b import gen_k1
from k2b import gen_k2
from k3c import gen_k3
from k4c import gen_k4, gen_k5

def gen_k0():
    k = Kern("k0_mod_kernel", vgpr=96, sgpr=48)
    end = k.newlabel("end")
    zero = k.newlabel("zero")
    NM = 108
    k(f"""s_load_dwordx2 s[4:5], s[0:1], {KA_C}
    s_load_dwordx2 s[6:7], s[0:1], {KA_WMOD}
    s_load_dwordx2 s[8:9], s[0:1], {KA_WS}
    s_load_dwordx2 s[32:33], s[0:1], {KA_WQKV}
    s_load_dwordx2 s[34:35], s[0:1], {KA_WO}
    s_waitcnt lgkmcnt(0)""")
    srd(k, 12, 4, 1152)
    srd(k, 16, 6, 576 * 6912)
    srd(k, 20, 8, WS_SIZE)
    prepq = k.newlabel("prepq")
    prepo = k.newlabel("prepo")
    k(f"""s_cmp_ge_u32 s2, {NM+8+216+41}
    s_cbranch_scc1 {end}
    s_cmp_ge_u32 s2, {NM+8+216}
    s_cbranch_scc1 {prepo}
    s_cmp_ge_u32 s2, {NM+8}
    s_cbranch_scc1 {prepq}
    s_cmp_ge_u32 s2, {NM}
    s_cbranch_scc1 {zero}""")
    k("""v_lshlrev_b32 v1, 1, v0
    buffer_load_ushort v2, v1, s[12:15], 0 offen
    v_lshrrev_b32 v6, 4, v0
    v_and_b32 v5, 15, v0
    s_lshl_b32 s24, s2, 6
    v_lshlrev_b32 v7, 2, v5
    v_add_u32 v7, s24, v7
    v_mul_u32_u24 v8, 62208, v6
    v_add_u32 v7, v7, v8""")
    for i in range(9):
        k(f"s_mov_b32 s26, {i * 6912}")
        k(f"buffer_load_dword v{16+i}, v7, s[16:19], s26 offen")
    k("""s_waitcnt vmcnt(9)
    v_lshlrev_b32 v2, 16, v2
    v_mul_f32 v3, 0xbfb8aa3b, v2
    v_exp_f32 v3, v3
    v_add_f32 v3, 1.0, v3
    v_rcp_f32 v3, v3
    v_mul_f32 v3, v2, v3""")
    round1(k, 3, 4)
    k("""v_lshlrev_b32 v1, 2, v0
    ds_write_b32 v1, v3
    s_waitcnt lgkmcnt(0)
    s_barrier
    v_mul_u32_u24 v9, 36, v6""")
    for i in range(9):
        k(f"ds_read_b32 v{32+i}, v9 offset:{4*i}")
    k("""v_mov_b32 v10, 0
    v_mov_b32 v11, 0
    s_waitcnt vmcnt(0) lgkmcnt(0)""")
    for i in range(9):
        k(f"v_lshlrev_b32 v12, 16, v{16+i}")
        k(f"v_and_b32 v13, 0xffff0000, v{16+i}")
        k(f"v_fmac_f32 v10, v12, v{32+i}")
        k(f"v_fmac_f32 v11, v13, v{32+i}")
    k("""v_lshlrev_b32 v12, 7, v6
    v_lshlrev_b32 v13, 3, v5
    v_add_u32 v12, v12, v13
    ds_write_b64 v12, v[10:11] offset:4096
    s_waitcnt lgkmcnt(0)
    s_barrier
    v_cmp_gt_u32 vcc, 32, v0
    s_and_saveexec_b64 s[28:29], vcc""")
    skip = k.newlabel("skip")
    k(f"s_cbranch_execz {skip}")
    k("v_lshlrev_b32 v12, 2, v0")
    for w in range(64):
        k(f"ds_read_b32 v{16+w}, v12 offset:{4096 + 128*w}")
    k("s_waitcnt lgkmcnt(0)")
    for w in range(0, 64, 4):
        k(f"v_add_f32 v{16+w}, v{16+w}, v{17+w}")
        k(f"v_add_f32 v{18+w}, v{18+w}, v{19+w}")
    for w in range(0, 64, 4):
        k(f"v_add_f32 v{16+w}, v{16+w}, v{18+w}")
    for w in range(4, 64, 4):
        k(f"v_add_f32 v16, v16, v{16+w}")
    round1(k, 16, 17)
    k("""s_lshl_b32 s24, s2, 5
    v_add_u32 v13, s24, v0
    v_add_f32 v18, 1.0, v16""")
    round1(k, 18, 17)
    k(f"""v_subrev_u32 v19, 576, v13
    v_cmp_gt_u32 vcc, 576, v19
    s_mov_b64 s[30:31], vcc
    v_subrev_u32 v19, 0x900, v13
    v_cmp_gt_u32 vcc, 576, v19
    s_or_b64 vcc, vcc, s[30:31]
    v_cndmask_b32 v16, v16, v18, vcc
    v_lshlrev_b32 v14, 1, v13
    v_lshlrev_b32 v13, 2, v13
    buffer_store_dword v16, v13, s[20:23], 0 offen
    s_mov_b32 s24, {WS_MODB}
    buffer_store_short_d16_hi v16, v14, s[20:23], s24 offen""")
    k.label(skip)
    k(f"s_branch {end}")
    k.label(zero)
    k(f"""s_sub_u32 s24, s2, {NM}
    s_lshl_b32 s24, s24, 14
    s_add_u32 s24, s24, {WS_KV}
    v_lshlrev_b32 v1, 4, v0
    v_mov_b32 v4, 0
    v_mov_b32 v5, 0
    v_mov_b32 v6, 0
    v_mov_b32 v7, 0
    buffer_store_dwordx4 v[4:7], v1, s[20:23], s24 offen""")
    k(f"s_branch {end}")
    k.label(prepq)
    srd(k, 12, 32, 576 * 3456)
    k(f"""s_sub_u32 s24, s2, {NM+8}
    s_lshl_b32 s24, s24, 10
    v_add_u32 v1, s24, v0
    v_lshrrev_b32 v2, 8, v1
    v_mul_u32_u24 v2, 2428, v2
    v_lshrrev_b32 v2, 16, v2
    v_mul_u32_u24 v3, 6912, v2
    v_sub_u32 v3, v1, v3
    v_mul_u32_u24 v4, 5462, v3
    v_lshrrev_b32 v4, 16, v4
    v_mul_u32_u24 v5, 12, v4
    v_sub_u32 v5, v3, v5
    v_lshrrev_b32 v6, 2, v5
    v_and_b32 v5, 3, v5
    v_mul_u32_u24 v4, 3456, v4
    v_mul_u32_u24 v6, 1152, v6
    v_add_u32 v4, v4, v6
    v_lshlrev_b32 v5, 4, v5
    v_add_u32 v4, v4, v5
    v_mul_u32_u24 v2, 36, v2
    v_add_u32 v4, v4, v2
    buffer_load_dwordx4 v[8:11], v4, s[12:15], 0 offen
    v_lshlrev_b32 v1, 4, v1
    s_mov_b32 s25, {WS_WQKV}
    s_waitcnt vmcnt(0)
    buffer_store_dwordx4 v[8:11], v1, s[20:23], s25 offen
    s_branch {end}""")
    k.label(prepo)
    srd(k, 12, 34, 576 * 1152)
    k(f"""s_sub_u32 s24, s2, {NM+8+216}
    s_lshl_b32 s24, s24, 10
    v_add_u32 v1, s24, v0
    v_lshrrev_b32 v2, 8, v1
    v_mul_u32_u24 v2, 7282, v2
    v_lshrrev_b32 v2, 16, v2
    v_mul_u32_u24 v3, 2304, v2
    v_sub_u32 v3, v1, v3
    v_lshrrev_b32 v4, 2, v3
    v_and_b32 v5, 3, v3
    v_mul_u32_u24 v4, 1152, v4
    v_lshlrev_b32 v5, 4, v5
    v_add_u32 v4, v4, v5
    v_lshlrev_b32 v2, 6, v2
    v_add_u32 v4, v4, v2
    v_cmp_gt_u32 vcc, 41472, v1
    s_and_saveexec_b64 s[28:29], vcc
    s_cbranch_execz {end}
    buffer_load_dwordx4 v[8:11], v4, s[12:15], 0 offen
    v_lshlrev_b32 v1, 4, v1
    s_mov_b32 s25, {WS_WO}
    s_waitcnt vmcnt(0)
    buffer_store_dwordx4 v[8:11], v1, s[20:23], s25 offen""")
    k.label(end)
    k("s_endpgm")
    return k, (NM+8+216+41, 1, 1), 1024, 12288


def gen_ln(name, src_is_ws, src_off, mod_s, mod_c, dst_off, prefetch=False):
    k = Kern(name, vgpr=208, sgpr=48)
    end = k.newlabel("end")
    k(f"""s_load_dwordx2 s[4:5], s[0:1], {KA_X}
    s_load_dwordx2 s[8:9], s[0:1], {KA_WS}
    s_waitcnt lgkmcnt(0)""")
    if src_is_ws:
        k(f"""s_add_u32 s4, s8, {src_off}
        s_addc_u32 s5, s9, 0""")
    srd(k, 12, 4, S * D * 2)
    srd(k, 20, 8, WS_SIZE)
    k(f"""s_cmp_ge_u32 s2, 256
    s_cbranch_scc1 {end}""")
    k(f"""v_lshrrev_b32 v1, 3, v0
    v_and_b32 v2, 7, v0
    s_lshl_b32 s24, s2, 3
    v_add_u32 v1, s24, v1
    v_mul_u32_u24 v3, 1152, v1
    v_lshlrev_b32 v4, 4, v2
    v_add_u32 v3, v3, v4
    s_mov_b32 s26, {WS_MODB + mod_c*1152}
    s_mov_b32 s27, {WS_MODB + mod_s*1152}""")
    for i in range(9):
        k(f"buffer_load_dwordx4 v[{8+4*i}:{11+4*i}], v3, s[12:15], 0 offen offset:{128*i}")
    MC, MS = 44, 80
    for i in range(9):
        k(f"buffer_load_dwordx4 v[{MC+4*i}:{MC+4*i+3}], v4, s[20:23], s26 offen offset:{128*i}")
        k(f"buffer_load_dwordx4 v[{MS+4*i}:{MS+4*i+3}], v4, s[20:23], s27 offen offset:{128*i}")
    k(f"""v_lshrrev_b32 v120, 5, v1
    v_mul_u32_u24 v120, 36864, v120
    v_lshrrev_b32 v121, 1, v2
    v_lshlrev_b32 v121, 10, v121
    v_add_u32 v120, v120, v121
    v_and_b32 v121, 1, v2
    v_lshlrev_b32 v121, 9, v121
    v_add_u32 v120, v120, v121
    v_and_b32 v121, 31, v1
    v_lshlrev_b32 v121, 4, v121
    v_add_u32 v120, v120, v121
    v_add_u32 v120, {dst_off}, v120""")
    if prefetch:
        k(f"""s_load_dwordx2 s[32:33], s[0:1], {KA_WG}
        s_load_dwordx2 s[34:35], s[0:1], {KA_WU}
        s_waitcnt lgkmcnt(0)
        s_mul_i32 s29, s2, 20736
        v_lshlrev_b32 v126, 4, v0""")
        srd(k, 36, 32, 576 * 9216)
        srd(k, 40, 34, 576 * 9216)
        for i in range(21):
            k(f"s_add_u32 s30, s29, {1024*i}")
            k(f"buffer_load_dwordx4 v[200:203], v126, s[36:39], s30 offen")
            k(f"buffer_load_dwordx4 v[204:207], v126, s[40:43], s30 offen")
        k("s_waitcnt vmcnt(60)")
    else:
        k("s_waitcnt vmcnt(18)")
    X = 128
    for i in range(36):
        k(f"v_lshlrev_b32 v{X+2*i}, 16, v{8+i}")
        k(f"v_and_b32 v{X+2*i+1}, 0xffff0000, v{8+i}")
    k(f"v_pk_add_f32 v[122:123], v[{X}:{X+1}], v[{X+2}:{X+3}]")
    for i in range(4, 72, 2):
        k(f"v_pk_add_f32 v[122:123], v[122:123], v[{X+i}:{X+i+1}]")
    k("v_add_f32 v5, v122, v123")

    def xreduce(r):
        k(f"v_add_f32_dpp v{r}, v{r}, v{r} quad_perm:[1,0,3,2] row_mask:0xf bank_mask:0xf")
        k(f"v_add_f32_dpp v{r}, v{r}, v{r} quad_perm:[2,3,0,1] row_mask:0xf bank_mask:0xf")
        k(f"v_add_f32_dpp v{r}, v{r}, v{r} row_half_mirror row_mask:0xf bank_mask:0xf")
    xreduce(5)
    k("v_mul_f32 v5, 0x3ae38e39, v5")
    k("v_mov_b32 v6, 0")
    k("v_mov_b32 v124, 0")
    for i in range(0, 72, 2):
        k(f"v_sub_f32 v7, v{X+i}, v5")
        k(f"v_sub_f32 v125, v{X+i+1}, v5")
        k(f"v_fmac_f32 v6, v7, v7")
        k(f"v_fmac_f32 v124, v125, v125")
    k("v_add_f32 v6, v6, v124")
    xreduce(6)
    k("v_mul_f32 v6, 0x3ae38e39, v6")
    round2(k, 5, 6, 7)
    k("v_add_f32 v6, 0x3727c5ac, v6")
    round1(k, 6, 7)
    k("v_sqrt_f32 v6, v6")
    round1(k, 6, 7)
    k("v_rcp_f32 v6, v6")
    for i in range(0, 72, 2):
        a, b = X + i, X + i + 1
        k(f"v_sub_f32 v{a}, v{a}, v5")
        k(f"v_sub_f32 v{b}, v{b}, v5")
        round2(k, a, b, 7 if (i // 2) % 2 else 122)
        k(f"v_mul_f32 v{a}, v{a}, v6")
        k(f"v_mul_f32 v{b}, v{b}, v6")
        round2(k, a, b, 123 if (i // 2) % 2 else 124)
    k(f"s_waitcnt vmcnt({42 if prefetch else 0})")
    for i in range(9):
        for j in range(0, 8, 2):
            a, b = X + 8 * i + j, X + 8 * i + j + 1
            mc, ms = MC + 4 * i + j // 2, MS + 4 * i + j // 2
            k(f"v_lshlrev_b32 v122, 16, v{mc}")
            k(f"v_and_b32 v123, 0xffff0000, v{mc}")
            k(f"v_lshlrev_b32 v124, 16, v{ms}")
            k(f"v_and_b32 v125, 0xffff0000, v{ms}")
            k(f"v_mul_f32 v{a}, v{a}, v122")
            k(f"v_mul_f32 v{b}, v{b}, v123")
            round2(k, a, b, 7)
            k(f"v_add_f32 v{a}, v{a}, v124")
            k(f"v_add_f32 v{b}, v{b}, v125")
            k(f"v_cvt_pk_bf16_f32 v{8 + 4*i + j//2}, v{a}, v{b}")
        k(f"s_mov_b32 s28, {4096*i}")
        k(f"buffer_store_dwordx4 v[{8+4*i}:{11+4*i}], v120, s[20:23], s28 offen")
    k.label(end)
    k("s_endpgm")
    return k, (256, 1, 1), 64, 0


KERNELS = []


def build(which=None):
    ks = [gen_k0(),
          gen_ln("ln1_kernel", False, 0, 0, 1, WS_H1),
          gen_k1(), gen_k2(),
          gen_ln("ln2_kernel", True, WS_X1, 3, 4, WS_H2, True), gen_k3(), gen_k4(), gen_k5()]
    return ks


def emit(ks, path):
    hdr = []
    for k, grid, block, lds in ks:
        hdr.append(f"; @launch kernel={k.name} grid=({grid[0]},{grid[1]},{grid[2]}) block=({block},1,1) lds={lds}")
    txt = "\n".join(hdr) + "\n"
    txt += '.amdgcn_target "amdgcn-amd-amdhsa--gfx950"\n.text\n'
    kds = []
    for k, grid, block, lds in ks:
        t, kd = k.text()
        txt += t
        kds.append(kd)
    txt += '.section .rodata,"a"\n'
    for kd in kds:
        txt += ".p2align 6\n" + kd
    open(path, "w").write(txt)


if __name__ == "__main__":
    out = sys.argv[1] if len(sys.argv) > 1 else f"cdna_kernels/{NAME}.s"
    emit(build(), out)
    print("wrote", out)
```

```python
from asmlib import Kern
from gencommon import *
def mk(name, mode):
    k = Kern(name, vgpr=128, sgpr=48)
    k(f"""s_load_dwordx2 s[4:5], s[0:1], 0
    s_waitcnt lgkmcnt(0)""")
    srd(k, 12, 4, 1 << 23)
    k(f"""v_and_b32 v2, 63, v0
    v_lshrrev_b32 v1, 6, v0
    v_readfirstlane_b32 s26, v1
    v_lshlrev_b32 v3, 4, v2
    s_and_b32 s24, s2, 15
    s_mul_i32 s28, s24, {448*1024}
    s_lshl_b32 s29, s26, 10
    s_add_u32 s28, s28, s29
    v_add_u32 v4, s29, v3
    s_mov_b32 s4, 7""")
    L = "loop_" + name
    k.label(L)
    for i in range(8):
        if mode == "dma":
            k(f"s_add_u32 m0, s29, {i*8192}")
            k(f"s_add_u32 s30, s28, {i*8192}")
            k(f"buffer_load_dwordx4 v3, s[12:15], s30 offen lds")
        else:
            k(f"s_add_u32 s30, s28, {i*8192}")
            k(f"buffer_load_dwordx4 v[{16+4*i}:{19+4*i}], v3, s[12:15], s30 offen")
    if mode == "vw":
        for i in range(8):
            k(f"s_waitcnt vmcnt({7-i})")
            k(f"ds_write_b128 v4, v[{16+4*i}:{19+4*i}] offset:{i*8192}")
    else:
        k("s_waitcnt vmcnt(4)")
    k(f"s_add_u32 s28, s28, 65536")
    k("s_sub_u32 s4, s4, 1")
    k("s_cmp_lg_u32 s4, 0")
    k(f"s_cbranch_scc1 {L}")
    k("s_waitcnt vmcnt(0) lgkmcnt(0)")
    k("s_endpgm")
    return k, (256, 1, 1), 512, 70000
ks = [mk("mb_dma_kernel", "dma"), mk("mb_vgpr_kernel", "v"), mk("mb_vw_kernel", "vw")]
from gen import emit
emit(ks, "mb5.s")
```
